```python
import torch

def _softmax(x, axis=-1):
    return torch.softmax(x, dim=axis)
def _gelu(x):
    return torch.nn.functional.gelu(x, approximate="tanh")
def _silu(x):
    return torch.nn.functional.silu(x)
def _sigmoid(x):
    return torch.sigmoid(x)
def _layernorm(x, axis=-1, eps=1e-5):
    m = x.mean(dim=axis, keepdim=True)
    v = x.var(dim=axis, keepdim=True, unbiased=False)
    return (x - m) / torch.sqrt(v + eps)
def _scatter_add(tgt, idx, src, axis=0):
    return tgt.clone().index_add_(axis, idx, src)
def _segment_sum(src, seg, n):
    out = torch.zeros((n,) + src.shape[1:], dtype=src.dtype)
    return out.index_add_(0, seg, src)
def _pad(x, pw):
    flat = tuple(v for pair in reversed(pw) for v in pair)
    return torch.nn.functional.pad(x, flat)

kernel_name = 'concat_heads__linear_kernel_hedgehog__ssm_conv_s4__prompt'

def setup_inputs():

    _w = (lambda a: (lambda t: t.to(torch.bfloat16) if t.is_floating_point() else t)(torch.as_tensor(a)))
    def _A_setup():
        B, S, D, H = 1, 2048, 1024, 32
        Dh = D // H
        return {
            "x": _w((lambda *s: torch.randn(*s, dtype=torch.bfloat16) * 0.4)(B, S, D)),
            "wqkv": _w((lambda *s: torch.randn(*s, dtype=torch.bfloat16) * 0.4)(D, 3 * D)),
            "w_phi": _w((lambda *s: torch.randn(*s, dtype=torch.bfloat16) * 0.4)(H, Dh, Dh) * (Dh ** -0.5)),
            "wo": _w((lambda *s: torch.randn(*s, dtype=torch.bfloat16) * 0.05)(D, D)),
        }
    _A_in = _A_setup()

    def _B_setup():
        B, L, D, N = 1, 2048, 1024, 128
        A_re = -(lambda _x: torch.exp(torch.as_tensor(_x)))((lambda *s: torch.randn(*s, dtype=torch.bfloat16) * 3.2)(D, N))
        A_im = torch.pi * (lambda *s: torch.randn(*s, dtype=torch.bfloat16) * 0.2)(D, N)
        B_re = (lambda *s: torch.randn(*s, dtype=torch.bfloat16) * 0.8)(D, N)
        B_im = (lambda *s: torch.randn(*s, dtype=torch.bfloat16) * 0.8)(D, N)
        C_re = (lambda *s: torch.randn(*s, dtype=torch.bfloat16) * 0.8)(D, N)
        C_im = (lambda *s: torch.randn(*s, dtype=torch.bfloat16) * 0.8)(D, N)
        log_dt = (lambda *s: torch.randn(*s, dtype=torch.bfloat16) * 0.2)(D) * 0.5 - 4.0
        Dskip = (lambda *s: torch.randn(*s, dtype=torch.bfloat16) * 1.6)(D)
        return {
            "u": _w((lambda *s: torch.randn(*s, dtype=torch.bfloat16) * 0.05)(B, L, D)),
            "A_re": _w(A_re),
            "A_im": _w(A_im),
            "B_re": _w(B_re),
            "B_im": _w(B_im),
            "C_re": _w(C_re),
            "C_im": _w(C_im),
            "log_dt": _w(log_dt),
            "Dskip": _w(Dskip),
        }
    _B_in = _B_setup()

    return {
        "A_x": _A_in["x"],
        "A_wqkv": _A_in["wqkv"],
        "A_w_phi": _A_in["w_phi"],
        "A_wo": _A_in["wo"],
        "B_u": _B_in["u"],
        "B_A_re": _B_in["A_re"],
        "B_A_im": _B_in["A_im"],
        "B_B_re": _B_in["B_re"],
        "B_B_im": _B_in["B_im"],
        "B_C_re": _B_in["C_re"],
        "B_C_im": _B_in["C_im"],
        "B_log_dt": _B_in["log_dt"],
        "B_Dskip": _B_in["Dskip"],
    }

def reference(A_x, A_wqkv, A_w_phi, A_wo, B_u, B_A_re, B_A_im, B_B_re, B_B_im, B_C_re, B_C_im, B_log_dt, B_Dskip):
    def _A_ref(x, wqkv, w_phi, wo):
        B, S, D = x.shape
        H = 32; Dh = D // H
        qkv = (lambda x, *d: x.permute(*d))((x @ wqkv).reshape(B, S, 3, H, Dh), 2, 0, 3, 1, 4)
        q, k, v = qkv[0], qkv[1], qkv[2]
        pq = torch.einsum("bhsd,hdf->bhsf", q, w_phi)
        pk = torch.einsum("bhsd,hdf->bhsf", k, w_phi)
        phi_q = torch.concatenate([_softmax(pq, axis=-1), _softmax(-pq, axis=-1)], axis=-1)
        phi_k = torch.concatenate([_softmax(pk, axis=-1), _softmax(-pk, axis=-1)], axis=-1)
        kv = torch.einsum("bhsf,bhsd->bhfd", phi_k, v)
        z  = torch.einsum("bhsf->bhf", phi_k)
        num = torch.einsum("bhqf,bhfd->bhqd", phi_q, kv)
        den = torch.einsum("bhqf,bhf->bhq", phi_q, z)[..., None] + 1e-6
        o = num / den
        return (lambda x, *d: x.permute(*d))(o, 0, 2, 1, 3).reshape(B, S, D) @ wo

    def _B_ref(u, A_re, A_im, B_re, B_im, C_re, C_im, log_dt, Dskip):
        Bsz, L, D = u.shape
        dt = torch.exp(log_dt)[:, None]
        A = A_re + 1j * A_im
        Bc = B_re + 1j * B_im
        Cc = C_re + 1j * C_im
        logdA = dt * A
        dB = dt * Bc
        l = (lambda x, dt: x.to(dt))(torch.arange(L), A_re.dtype)
        P = torch.exp(logdA[:, :, None] * l[None, None, :])
        K = torch.einsum("dn,dnl,dn->dl", Cc, P, dB).real
        L2 = 2 * L
        Kp = _pad(K, ((0, 0), (0, L)))
        up = (lambda x, *d: x.permute(*d))(u, 0, 2, 1)
        up = _pad(up, ((0, 0), (0, 0), (0, L)))
        Kf = (lambda x, axes=(-2,-1): torch.fft.rfft2(x.float(), dim=axes))(Kp[:, None, :], axes=(-2, -1))
        Uf = (lambda x, axes=(-2,-1): torch.fft.rfft2(x.float(), dim=axes))(up[:, :, None, :], axes=(-2, -1))
        Yf = Uf * Kf[None, :, :, :]
        y = (lambda x, s, axes=(-2,-1): torch.fft.irfft2(x, s=s, dim=axes).to(torch.bfloat16))(Yf, (1, L2), axes=(-2, -1))[:, :, 0, :L]
        y = (lambda x, *d: x.permute(*d))(y, 0, 2, 1) + u * Dskip[None, None, :]
        return y

    a = _A_ref(A_x, A_wqkv, A_w_phi, A_wo)
    b = _B_ref(B_u, B_A_re, B_A_im, B_B_re, B_B_im, B_C_re, B_C_im, B_log_dt, B_Dskip)
    return torch.concatenate([a, b], axis=-1)
```

```python
import re

TRANS = ("v_exp_f32", "v_log_f32", "v_rcp_f32", "v_rsq_f32", "v_sqrt_f32", "v_sin_f32", "v_cos_f32")
RMW = ("v_fmac_f32", "v_dot2c_f32_bf16", "v_pk_fmac")

def regs_of(tok):
    tok = tok.strip()
    neg = tok.lstrip("-")
    m = re.fullmatch(r"abs\((.*)\)|\|(.*)\|", neg)
    if m: neg = m.group(1) or m.group(2)
    m = re.fullmatch(r"([vas])(\d+)", neg)
    if m: return [(m.group(1), int(m.group(2)))]
    m = re.fullmatch(r"([vas])\[(\d+):(\d+)\]", neg)
    if m: return [(m.group(1), i) for i in range(int(m.group(2)), int(m.group(3)) + 1)]
    if neg == "vcc": return [("s", "vcc")]
    if neg in ("vcc_lo", "vcc_hi"): return [("s", "vcc")]
    if neg == "exec": return [("s", "exec")]
    if neg == "m0": return [("s", "m0")]
    return []

class Ins:
    def __init__(self, text):
        self.text = text
        t = text.split(";")[0].strip()
        self.label = t[:-1] if t.endswith(":") else None
        self.directive = t.startswith(".") or t == ""
        self.op = None; self.rd = set(); self.wr = set(); self.kind = None
        if self.label or self.directive: return
        parts = t.split(None, 1)
        op = parts[0]; self.op = re.sub(r"_e(32|64)$", "", op)
        rest = parts[1] if len(parts) > 1 else ""
        toks = [x.strip() for x in rest.split(",")] if rest else []
        mods = ""
        if toks:
            last = toks[-1].split(None, 1)
            body = []
            for i, x in enumerate(toks):
                sp = x.split(None, 1)
                body.append(sp[0])
                if len(sp) > 1:
                    mods = sp[1] + "," + ",".join(toks[i + 1:]); break
            toks = body
        self.toks = toks; self.mods = mods
        op = self.op
        R = [regs_of(x) for x in toks]
        flat = lambda l: set(r for x in l for r in x)
        if op.startswith("v_mfma"):
            self.kind = "mfma"; self.wr = set(R[0]); self.A = set(R[1]); self.B = set(R[2]); self.C = set(R[3])
            self.rd = self.A | self.B | self.C
            self.passes = 8 if "32x32x16" in op else 4 if "16x16x32" in op else None
            assert self.passes, op
        elif op.startswith("v_"):
            self.kind = "valu"
            if op.startswith("v_cmp") or op in ("v_readfirstlane_b32", "v_readlane_b32"):
                self.wr = set(R[0]); self.rd = flat(R[1:])
            elif op.startswith("v_permlane") and "swap" in op:
                self.wr = flat(R); self.rd = flat(R)
            elif op in ("v_add_co_u32", "v_sub_co_u32", "v_addc_co_u32", "v_subb_co_u32"):
                self.wr = set(R[0]) | set(R[1]); self.rd = flat(R[2:])
            elif op == "v_nop": pass
            else:
                self.wr = set(R[0]); self.rd = flat(R[1:])
                if op in RMW or op == "v_writelane_b32": self.rd |= set(R[0])
                if op == "v_cndmask_b32" and len(toks) == 3: self.rd.add(("s", "vcc"))
            self.trans = op in TRANS
            self.dot = op.startswith("v_dot")
            self.dpp = "dpp" in op or "row_" in mods or "quad_perm" in mods
        elif op.startswith("ds_"):
            self.kind = "ds"
            if op.startswith("ds_read") or op.startswith("ds_bpermute") or op.startswith("ds_swizzle"):
                self.wr = set(R[0]); self.rd = flat(R[1:])
            else: self.rd = flat(R)
        elif op.startswith("buffer_") or op.startswith("global_"):
            self.kind = "vmem"
            self.lds = bool(re.search(r"\blds\b", mods)) or "_lds_" in op
            if op in ("buffer_inv", "buffer_wbl2"): pass
            elif "store" in op or ("atomic" in op and "sc0" not in mods) or self.lds:
                self.rd = flat(R)
                if self.lds: self.rd.add(("s", "m0"))
            else:
                self.wr = set(R[0]); self.rd = flat(R[1:])
                if "atomic" in op or "d16" in op: self.rd |= set(R[0])
            self.wide_store = ("store" in op) and ("x4" in op or "x3" in op)
            if self.wide_store:
                self.sdata = set(R[0]) if op.startswith("buffer") else set(R[1])
        elif op.startswith("s_load") or op.startswith("s_buffer_load") or op in ("s_memtime", "s_memrealtime"):
            self.kind = "smem"; self.wr = set(R[0]); self.rd = flat(R[1:])
        elif op.startswith("s_"):
            self.kind = "salu"
            if op in ("s_waitcnt", "s_barrier", "s_nop", "s_sleep", "s_setprio", "s_endpgm", "s_branch") or op.startswith("s_cbranch"):
                if op in ("s_cbranch_vccz", "s_cbranch_vccnz"): self.rd = {("s", "vcc")}
            elif op.startswith("s_cmp") or op.startswith("s_bitcmp"): self.rd = flat(R)
            else:
                self.wr = set(R[0]); self.rd = flat(R[1:])
                if "saveexec" in op: self.wr.add(("s", "exec")); self.rd.add(("s", "exec"))
                if op in ("s_addk_i32", "s_mulk_i32"): self.rd |= set(R[0])
        else:
            raise ValueError("unknown instr: " + text)
    @property
    def states(self):
        if self.op == "s_nop": return int(self.toks[0], 0) + 1
        return 1

def need(p, c):
    n = 0
    V = lambda s: set(r for r in s if r[0] in "va")
    S = lambda s: set(r for r in s if r[0] == "s")
    if p.kind == "valu":
        w = V(p.wr); sw = S(p.wr)
        if c.kind == "mfma" and w & c.rd: n = max(n, 3 if p.dot else 2)
        if c.kind == "valu":
            if c.op.startswith("v_permlane") and w & c.rd: n = max(n, 2)
            if c.dpp and w & c.rd: n = max(n, 2)
            if p.trans and not c.trans and w & c.rd: n = max(n, 1)
            if c.op in ("v_readfirstlane_b32", "v_readlane_b32") and w & c.rd: n = max(n, 1)
            if sw & c.rd: n = max(n, 4 if c.op in ("v_readlane_b32", "v_writelane_b32") else 2)
            if p.dot and w & (c.rd | c.wr):
                same_c = (c.op == p.op) and not (w & set(regs_of(c.toks[1]) + regs_of(c.toks[2])))
                if not same_c: n = max(n, 3)
        if p.dot and c.kind in ("vmem", "ds") and w & c.rd: n = max(n, 3)
        if c.kind == "vmem" and sw & c.rd: n = max(n, 5)
        if c.kind in ("salu", "smem") and sw & c.rd: n = max(n, 2)
    if p.kind == "mfma":
        big = 12 if p.passes == 8 else 8
        if c.kind == "mfma":
            if p.wr & (c.A | c.B): n = max(n, big)
            if p.wr & c.C and not (p.wr == c.C and p.passes == c.passes): n = max(n, 10 if p.passes == 8 else 6)
            if p.wr & c.wr and not (p.wr & c.C): n = max(n, big)
        elif c.kind in ("valu", "vmem", "ds"):
            if p.wr & (c.rd | c.wr): n = max(n, big)
            if c.kind == "valu" and p.C & c.wr: n = max(n, 7 if p.passes == 8 else 3)
    if p.kind == "salu" and ("s", "m0") in p.wr and c.kind == "vmem" and c.lds: n = max(n, 1)
    if p.kind == "vmem" and p.wide_store:
        if p.sdata & c.wr: n = max(n, 2 if c.kind in ("valu", "mfma") else 1)
    return n

class Prog:
    def __init__(self):
        self.ins = []
    def __call__(self, text):
        for l in text.split("\n"):
            l = l.strip()
            if l and not l.startswith(";"): self.ins.append(Ins(l))
        return self
    def extend(self, lst):
        for x in lst: self(x)
    def finalize(self, verbose=False):
        for _ in range(3):
            self._pad()
        self._check_waits()
        return "\n".join(("" if (i.label or i.directive) else "    ") + i.text for i in self.ins)
    def _pad(self):
        W = 24
        saved = {}
        hist = []
        for i in self.ins:
            if i.label or i.directive: continue
            hist = (hist + [i])[-W:]
            if i.op == "s_branch" or i.op.startswith("s_cbranch"):
                saved.setdefault(i.toks[0], []).append(list(hist))
        out = []; hists = [[]]
        for i in self.ins:
            if i.directive: out.append(i); continue
            if i.label:
                hists = hists + [list(h) for h in saved.get(i.label, [])]
                out.append(i); continue
            worst = 0
            for h in hists:
                d = 0
                for p in reversed(h):
                    r = need(p, i) - d
                    if r > worst: worst = r
                    d += p.states
                    if d >= W: break
            while worst > 0:
                k = min(worst, 16)
                nop = Ins(f"s_nop {k-1}")
                out.append(nop); hists = [(h + [nop])[-W:] for h in hists]; worst -= k
            out.append(i)
            hists = [(h + [i])[-W:] for h in hists]
            if len(hists) > 1 and all(h == hists[0] for h in hists): hists = hists[:1]
            if i.op in ("s_branch", "s_endpgm"): hists = []
            if not hists and False: pass
        self.ins = out
    def _check_waits(self):
        def merge(a, b):
            if a is None: return b
            if b is None: return a
            res = []
            for x, y in zip(a, b):
                n = max(len(x), len(y))
                res.append([(x[k] if k < len(x) else set()) | (y[k] if k < len(y) else set()) for k in range(n)])
            return res
        saved = {}; st = [[], [], []]; seen = set(); errs = []
        for idx, i in enumerate(self.ins):
            if i.directive: continue
            if i.label:
                seen.add(i.label); st = merge(st, saved.get(i.label));
                if st is None: st = [[], [], []]
                continue
            if st is None: st = [[], [], []]
            pend = set().union(*st[0], *st[1], *st[2]) if (st[0] or st[1] or st[2]) else set()
            touched = (i.rd | i.wr) & pend
            if touched and not (i.kind == "vmem" and "d16" in i.op and not (touched - i.wr)):
                errs.append(f"waitcnt: '{i.text}' touches pending {sorted(touched, key=str)[:4]} (ins #{idx})")
            if i.op == "s_waitcnt":
                t = i.text
                m = re.search(r"vmcnt\((\d+)\)", t)
                if m: st[0] = st[0][:int(m.group(1))]
                m = re.search(r"lgkmcnt\((\d+)\)", t)
                if m:
                    n = int(m.group(1))
                    if n == 0: st[1] = []; st[2] = []
                    elif not st[2]: st[1] = st[1][:n]
            elif i.kind == "vmem":
                st[0] = [set(i.wr)] + st[0]
                if len(st[0]) > 63 and any(st[0][63:]): pass
            elif i.kind == "ds": st[1] = [set(i.wr)] + st[1]
            elif i.kind == "smem": st[2] = [set(i.wr)] + st[2]
            if i.op == "s_branch" or (i.op or "").startswith("s_cbranch"):
                L = i.toks[0]
                if L in seen:
                    if any(any(x) for x in st): errs.append(f"waitcnt: backward branch {i.text} with pending loads")
                else: saved[L] = merge(saved.get(L), [list(x) for x in st])
            if i.op in ("s_branch", "s_endpgm"): st = None
        if errs:
            raise RuntimeError("\n".join(errs[:20]))

def interleave(main, fill, per=None, start=0):
    out = []; n = len(main) - start; k = 0
    for j, m in enumerate(main):
        out.append(m)
        if j < start: continue
        tgt = min(len(fill), (per * (j - start + 1)) if per else -(-len(fill) * (j - start + 1) // n))
        while k < tgt: out.append(fill[k]); k += 1
    out.extend(fill[k:])
    return out
```

```python
import sys, struct
from asmgen import Prog, interleave

NAME = "concat_heads__linear_kernel_hedgehog__ssm_conv_s4__prompt_kernel"

class Cfg:
    rot = (2, 4)
    stamps = False
    conv_split = 5
    spin = 1 << 18

WS_UT, WS_YT, WS_O, WS_KV, WS_FL, WS_ST = 0, 4 << 20, 8 << 20, 12 << 20, 16 << 20, 17 << 20
WS_SIZE = 32 << 20
KVREC = 2176
STG = 40960
XR = 3 * STG
KGS = 8704
WPHI = XR + 4 * KGS
TBS = 7424
T_KA, T_KB, T_R2, T_R3, T_U = 0, 1216, 2432, 2944, 3264
KVF = XR + 4 * TBS
ZF = KVF + 8192
LDS_BYTES = 163840
LOG2E = 0x3fb8aa3b
INV2PI = 0x3e22f983

sX, sWQ, sWP, sWO, sU, sARE, sAIM, sBRE, sBIM, sCRE, sCIM, sLDT, sDSK, sOUT, sDBG, sWS = range(4, 36, 2)
rX, rW, rWS, rOUT, rWO, rU, rDBG = 36, 40, 44, 48, 52, 56, 60
sXCD, sJ, sRB, sHP, sRB2, sCB, sWV, sROT = range(64, 72)
sT0, sT1, sT2, sT3, sKX, sKW, sMX, sMW = range(72, 80)
sWOF = 80
sCH, sL2E, sSPIN = 86, 87, 88
sE0 = 90
sSTAMP = 92

def sp(r): return f"s[{r}:{r+1}]"
def s4(r): return f"s[{r}:{r+3}]"
def v(r, n=1): return f"v{r}" if n == 1 else f"v[{r}:{r+n-1}]"

def srd(p, r, ptr, size):
    p(f"s_mov_b32 s{r}, s{ptr}\ns_mov_b32 s{r+1}, s{ptr+1}\ns_mov_b32 s{r+2}, {size:#x}\ns_mov_b32 s{r+3}, 0x20000")

class Gen:
    def __init__(self, cfg):
        self.c = cfg; self.p = Prog(); self.nlab = 0; self.nst = {"C": 0, "P": 0}
    def lab(self, s):
        self.nlab += 1; return f"L{s}_{self.nlab}"
    def stamp(self, role):
        if not self.c.stamps: return
        i = self.nst[role]; self.nst[role] += 1
        self.p(f"s_memrealtime {sp(sSTAMP)}\ns_waitcnt lgkmcnt(0)\nv_writelane_b32 v255, s{sSTAMP}, {i}")
    def stamp_store(self):
        if not self.c.stamps: return
        p = self.p
        p(f"s_lshl_b32 s{sT0}, s2, 3\ns_add_u32 s{sT0}, s{sT0}, s{sWV}\ns_lshl_b32 s{sT0}, s{sT0}, 8\ns_add_u32 s{sT0}, s{sT0}, {WS_ST}")
        p(f"v_lshlrev_b32 v254, 2, v1\nbuffer_store_dword v255, v254, {s4(rWS)}, s{sT0} offen")

    def prologue(self):
        p = self.p; c = self.c
        p(f"s_cmp_ge_u32 s2, 256\ns_cbranch_scc1 L_end")
        p(f"s_load_dwordx16 s[4:19], s[0:1], 0\ns_load_dwordx16 s[20:35], s[0:1], 64")
        p(f"v_lshrrev_b32 v2, 6, v0\nv_and_b32 v1, 63, v0")
        p(f"s_and_b32 s{sXCD}, s2, 7\ns_lshr_b32 s{sJ}, s2, 3")
        p(f"v_readfirstlane_b32 s{sWV}, v2")
        p(f"s_and_b32 s{sT0}, s{sXCD}, 1\ns_lshl_b32 s{sT0}, s{sT0}, 3\ns_and_b32 s{sRB}, s{sJ}, 7\ns_add_u32 s{sRB}, s{sRB}, s{sT0}")
        p(f"s_lshr_b32 s{sT0}, s{sXCD}, 1\ns_lshl_b32 s{sT0}, s{sT0}, 2\ns_lshr_b32 s{sHP}, s{sJ}, 3\ns_add_u32 s{sHP}, s{sHP}, s{sT0}")
        p(f"s_lshl_b32 s{sT0}, s{sXCD}, 1\ns_lshr_b32 s{sRB2}, s{sJ}, 4\ns_add_u32 s{sRB2}, s{sRB2}, s{sT0}\ns_and_b32 s{sCB}, s{sJ}, 15")
        p(f"s_mul_i32 s{sROT}, s{sRB}, {c.rot[0]}\ns_mul_i32 s{sT0}, s{sHP}, {c.rot[1]}\ns_add_u32 s{sROT}, s{sROT}, s{sT0}")
        p(f"s_mov_b32 s{sL2E}, {LOG2E:#x}")
        if c.stamps: p("v_mov_b32 v255, 0")
        p("s_waitcnt lgkmcnt(0)")
        srd(p, rX, sX, 4 << 20); srd(p, rW, sWQ, 6 << 20); srd(p, rWS, sWS, WS_SIZE); srd(p, rOUT, sOUT, 8 << 20)
        srd(p, rWO, sWO, 2 << 20); srd(p, rU, sU, 4 << 20); srd(p, rDBG, sDBG, 256)
        p(f"s_cmp_ge_u32 s{sWV}, 4\ns_cbranch_scc1 L_P")

    def poll(self, srdreg, vaddr, vtmp, want, soff="0"):
        p = self.p; L = self.lab("poll"); D = self.lab("pdone")
        p(f"s_mov_b32 s{sSPIN}, 0\n{L}:\nbuffer_load_dword v{vtmp}, v{vaddr}, {s4(srdreg)}, {soff} offen sc1")
        p(f"s_add_u32 s{sSPIN}, s{sSPIN}, 1\ns_waitcnt vmcnt(0)\nv_cmp_ne_u32 vcc, {want}, v{vtmp}")
        p(f"s_cmp_ge_u32 s{sSPIN}, {self.c.spin}\ns_cbranch_scc1 {D}\ns_cbranch_vccnz {L}\n{D}:")

    def dma_slab(self, s):
        st = (s % 3) * STG
        L = [f"s_add_u32 s{sT0}, s{sROT}, {s}", f"s_and_b32 s{sT0}, s{sT0}, 15", f"s_lshl_b32 s{sKX}, s{sT0}, 7", f"s_mul_i32 s{sKW}, s{sT0}, {64*6144}"]
        for i in range(4):
            L += [f"s_add_u32 m0, s{sMX}, {st + i*1024}", f"s_add_u32 s{sT1}, s{sKX}, {i*16384}",
                  f"buffer_load_dwordx4 v{2 + (i & 1)}, {s4(rX)}, s{sT1} offen lds"]
        for i in range(6):
            L += [f"s_add_u32 m0, s{sMW}, {st + i*1024}", f"s_add_u32 s{sT1}, s{sKW}, s{sWOF+i}",
                  f"buffer_load_dwordx4 v4, {s4(rW)}, s{sT1} offen lds"]
        return L
    def dma_wo(self, pos):
        dst = pos * 8192 if pos < 15 else KVF
        L = [f"s_add_u32 s{sT0}, s{sCB}, {pos}", f"s_and_b32 s{sT0}, s{sT0}, 15", f"s_lshl_b32 s{sT0}, s{sT0}, 17"]
        for i in range(2):
            L += [f"s_add_u32 m0, s{sT3}, {dst + i*1024}", f"s_add_u32 s{sT1}, s{sT0}, {i*16384}",
                  f"buffer_load_dwordx4 v5, {s4(rWO)}, s{sT1} offen lds"]
        return L
    def set_flag(self, off_code):
        p = self.p
        p(off_code)
        p(f"v_mov_b32 v14, s{sT0}\nv_mov_b32 v15, 1\ns_mov_b64 exec, 1\nbuffer_store_dword v15, v14, {s4(rWS)}, 0 offen sc1\ns_mov_b64 exec, -1")

    def producer(self):
        p = self.p; c = self.c
        p("L_P:")
        self.stamp("P")
        p(f"s_sub_u32 s{sT2}, s{sWV}, 4")
        p(f"""v_lshrrev_b32 v6, 3, v1
              v_and_b32 v7, 7, v1
              v_lshrrev_b32 v8, 4, v1
              s_lshl_b32 s{sT0}, s{sRB}, 7
              s_lshl_b32 s{sT1}, s{sT2}, 5
              s_add_u32 s{sT0}, s{sT0}, s{sT1}
              v_add_u32 v9, s{sT0}, v6
              v_lshlrev_b32 v9, 11, v9
              v_xor_b32 v10, v7, v8
              v_lshl_add_u32 v2, v10, 4, v9
              v_xor_b32 v10, 4, v10
              v_lshl_add_u32 v3, v10, 4, v9
              v_and_b32 v10, 1, v8
              v_lshlrev_b32 v10, 2, v10
              v_xor_b32 v10, v10, v7
              v_lshlrev_b32 v10, 4, v10
              v_mul_u32_u24 v11, 6144, v6
              s_lshl_b32 s{sT0}, s{sHP}, 7
              v_add3_u32 v4, v10, v11, s{sT0}
              s_lshl_b32 s{sMX}, s{sT2}, 12
              s_mul_i32 s{sMW}, s{sT2}, 6144
              s_add_u32 s{sMW}, s{sMW}, 16384""")
        for i in range(6):
            p(f"""s_mul_i32 s{sT0}, s{sT2}, 6
                  s_add_u32 s{sT0}, s{sT0}, {i}
                  s_lshr_b32 s{sT1}, s{sT0}, 3
                  s_lshl_b32 s{sT1}, s{sT1}, 11
                  s_and_b32 s{sT0}, s{sT0}, 7
                  s_mul_i32 s{sT0}, s{sT0}, {8*6144}
                  s_add_u32 s{sWOF+i}, s{sT0}, s{sT1}""")
        p.extend(self.dma_slab(0))
        p(f"""s_lshl_b32 s{sT0}, s{sHP}, 7
              v_lshl_add_u32 v12, v7, 4, v9
              v_add_u32 v12, s{sT0}, v12""")
        for i in range(4):
            p(f"s_add_u32 m0, s{sMX}, {2*STG + i*1024}\ns_mov_b32 s{sT1}, {i*16384}\nbuffer_load_dwordx4 v12, {s4(rU)}, s{sT1} offen lds")
        p.extend(self.dma_slab(1))
        p(f"""s_lshl_b32 s{sT0}, s{sT2}, 4
              v_add_u32 v11, s{sT0}, v6
              v_lshlrev_b32 v11, 11, v11
              s_lshl_b32 s{sT0}, s{sCB}, 7
              v_add3_u32 v5, v10, v11, s{sT0}
              s_lshl_b32 s{sT3}, s{sT2}, 11""")
        p(f"""v_and_b32 v13, 15, v1
              v_lshrrev_b32 v14, 2, v13
              v_lshl_add_u32 v14, v8, 3, v14
              v_lshlrev_b32 v14, 7, v14
              v_and_b32 v15, 3, v1
              v_lshl_add_u32 v14, v15, 3, v14
              s_add_u32 s{sT0}, s{sMX}, {2*STG}
              v_add_u32 v14, s{sT0}, v14
              v_lshlrev_b32 v15, 6, v13
              v_lshl_add_u32 v15, v8, 4, v15
              s_lshl_b32 s{sT0}, s{sHP}, 4
              s_add_u32 s{sT0}, s{sT0}, s{sRB}
              s_lshl_b32 s{sT0}, s{sT0}, 14
              s_add_u32 s{sT0}, s{sT0}, s{sMX}
              v_add_u32 v15, s{sT0}, v15
              s_waitcnt vmcnt(10)""")
        for q in range(4):
            for e in range(2):
                p(f"ds_read_b64_tr_b16 {v(16+4*q+2*e,2)}, v14 offset:{q*32 + e*512}")
        for q in range(4):
            p(f"s_waitcnt lgkmcnt({6-2*q})\nbuffer_store_dwordx4 {v(16+4*q,4)}, v15, {s4(rWS)}, 0 offen offset:{q*1024} sc1")
        p(f"""s_lshl_b32 s{sT0}, s{sHP}, 8
              s_lshl_b32 s{sT1}, s{sRB}, 2
              s_add_u32 s{sT0}, s{sT0}, s{sT1}
              s_add_u32 s{sT0}, s{sT0}, {WS_FL}
              v_mov_b32 v240, s{sT0}
              s_lshl_b32 s{sT0}, s{sRB}, 8
              s_lshl_b32 s{sT1}, s{sHP}, 2
              s_add_u32 s{sT0}, s{sT0}, s{sT1}
              s_add_u32 s{sT0}, s{sT0}, {WS_FL + 4096}
              v_mov_b32 v241, s{sT0}
              v_mov_b32 v243, 0x40000000
              v_cmp_eq_u32 vcc, 256, v0
              v_cndmask_b32 v240, v243, v240, vcc
              v_cndmask_b32 v241, v243, v241, vcc
              v_add_u32 v242, 8192, v240
              v_mov_b32 v243, 0
              v_mov_b32 v244, 1
              buffer_store_dword v243, v240, {s4(rWS)}, 0 offen sc1
              buffer_store_dword v243, v241, {s4(rWS)}, 0 offen sc1
              buffer_store_dword v243, v242, {s4(rWS)}, 0 offen sc1""")
        p(f"""v_lshlrev_b32 v13, 2, v13
              s_lshl_b32 s{sT0}, s{sHP}, 6
              s_lshl_b32 s{sT1}, s{sT2}, 4
              s_add_u32 s{sT0}, s{sT0}, s{sT1}
              v_add_u32 v14, s{sT0}, v8
              v_lshlrev_b32 v14, 12, v14
              v_lshl_add_u32 v14, v13, 2, v14
              s_lshl_b32 s{sT0}, s{sRB}, 8
              v_add_u32 v14, s{sT0}, v14
              v_bfe_u32 v15, v1, 2, 2
              v_mul_u32_u24 v15, {TBS}, v15
              v_lshl_add_u32 v15, v8, 6, v15
              v_and_b32 v12, 3, v1
              v_lshl_add_u32 v15, v12, 4, v15
              s_lshl_b32 s{sT0}, s{sT2}, 10
              s_add_u32 s{sT0}, s{sT0}, {XR + T_U + 16}
              v_add_u32 v15, s{sT0}, v15""")
        self.stamp("P")
        p("s_barrier")
        for s in range(16):
            if s == 11: p(f"buffer_load_dword v12, v13, {s4(rDBG)}, 0 offen sc1")
            if s + 2 < 16: p.extend(self.dma_slab(s + 2))
            if s == 12:
                for q in range(4):
                    p(f"s_mov_b32 s{sT1}, {WS_UT + q*16384}\nbuffer_load_dwordx4 {v(16+4*q,4)}, v14, {s4(rWS)}, s{sT1} offen sc1")
            if s == 14:
                for pos in range(5, 10): p.extend(self.dma_wo(pos))
            if s == 15:
                for pos in range(10, 15): p.extend(self.dma_wo(pos))
            if s < 15: p(f"s_waitcnt vmcnt({10 + {0: 7, 12: 4}.get(s, 0)})")
            if s == 11:
                L = self.lab("cntok")
                p(f"v_cmp_ne_u32 vcc, 16, v12\ns_cbranch_vccz {L}")
                self.poll(rDBG, 13, 12, 16)
                p(f"{L}:")
            p("s_barrier")
        self.stamp("P")
        for pos in range(0, 5): p.extend(self.dma_wo(pos))
        p("s_barrier")
        p("s_barrier")
        p(f"buffer_store_dword v244, v240, {s4(rWS)}, 0 offen sc1")
        self.stamp("P")
        for q in range(4):
            p(f"ds_write_b128 v15, {v(16+4*q,4)} offset:{q*256}")
        p("s_waitcnt lgkmcnt(0)\ns_barrier")
        p(f"s_lshl_b32 s{sT0}, s{sHP}, 8\ns_add_u32 s{sT0}, s{sT0}, {WS_FL}\nv_add_u32 v12, s{sT0}, v13")
        self.poll(rWS, 12, 14, 1)
        self.stamp("P")
        p(f"""s_mul_i32 s{sT3}, s{sHP}, {16*4*KVREC}
              s_mul_i32 s{sT0}, s{sT2}, {KVREC}
              s_add_u32 s{sT3}, s{sT3}, s{sT0}
              s_add_u32 s{sT3}, s{sT3}, {WS_KV}
              v_lshlrev_b32 v12, 4, v1
              v_and_b32 v14, 31, v1
              v_lshlrev_b32 v14, 2, v14
              v_mov_b32 v10, 0x3f80
              v_mov_b32 v11, 0x3f800000""")
        D0 = 32
        for m in range(16):
            p(f"""s_add_u32 s{sT0}, s{sRB}, {m}
                  s_and_b32 s{sT0}, s{sT0}, 15
                  s_mul_i32 s{sT0}, s{sT0}, {4*KVREC}
                  s_add_u32 s{sT0}, s{sT0}, s{sT3}
                  buffer_load_dwordx4 {v(D0+8*m,4)}, v12, {s4(rWS)}, s{sT0} offen sc1
                  buffer_load_dwordx4 {v(D0+8*m+4,4)}, v12, {s4(rWS)}, s{sT0} offen offset:1024 sc1
                  buffer_load_dword v{160+m}, v14, {s4(rWS)}, s{sT0} offen offset:2048 sc1""")
        for r in range(17): p(f"v_mov_b32 v{176+r}, 0")
        for m in range(16):
            p(f"s_waitcnt vmcnt({3*(15-m)})")
            for d in range(8):
                p(f"v_dot2c_f32_bf16 v{176+2*d}, v{D0+8*m+d}, v10\nv_dot2c_f32_bf16 v{177+2*d}, v{D0+8*m+d}, v11")
            p(f"v_add_f32 v192, v192, v{160+m}")
        for d in range(8): p(f"v_cvt_pk_bf16_f32 v{16+d}, v{176+2*d}, v{177+2*d}")
        p(f"""v_cvt_pk_bf16_f32 v24, v192, v192
              s_lshl_b32 s{sT0}, s{sT2}, 11
              s_add_u32 s{sT0}, s{sT0}, {KVF}
              v_add_u32 v12, s{sT0}, v12
              ds_write_b128 v12, v[16:19]
              ds_write_b128 v12, v[20:23] offset:1024
              v_and_b32 v14, 0x13, v1
              v_bfe_u32 v25, v1, 2, 1
              v_lshl_or_b32 v14, v25, 3, v14
              v_bfe_u32 v25, v1, 3, 1
              v_lshl_or_b32 v14, v25, 2, v14
              v_lshlrev_b32 v14, 1, v14
              s_lshl_b32 s{sT0}, s{sT2}, 6
              s_add_u32 s{sT0}, s{sT0}, {ZF}
              v_add_u32 v14, s{sT0}, v14
              s_mov_b32 exec_hi, 0
              ds_write_b16 v14, v24
              s_mov_b64 exec, -1
              s_waitcnt lgkmcnt(0)""")
        self.stamp("P")
        p("s_barrier")
        p("s_barrier")
        p(f"buffer_store_dword v244, v241, {s4(rWS)}, 0 offen sc1\ns_lshl_b32 s{sT3}, s{sT2}, 11")
        p.extend(self.dma_wo(15))
        p("s_waitcnt vmcnt(0)")
        self.stamp("P")
        p("s_barrier")
        p(f"buffer_store_dword v244, v242, {s4(rWS)}, 0 offen sc1")
        p(f"s_lshl_b32 s{sT0}, s{sHP}, 8\ns_add_u32 s{sT0}, s{sT0}, {WS_FL + 8192}\nv_add_u32 v12, s{sT0}, v13")
        self.poll(rWS, 12, 14, 1)
        self.stamp("P")
        p(f"""v_lshrrev_b32 v12, 2, v1
              s_lshl_b32 s{sT0}, s{sHP}, 6
              v_add_u32 v12, s{sT0}, v12
              v_lshlrev_b32 v12, 12, v12
              v_and_b32 v14, 3, v1
              v_lshl_add_u32 v12, v14, 4, v12
              s_lshl_b32 s{sT0}, s{sRB}, 8
              s_lshl_b32 s{sT1}, s{sT2}, 6
              s_add_u32 s{sT0}, s{sT0}, s{sT1}
              v_add_u32 v12, s{sT0}, v12""")
        for q in range(4):
            p(f"s_mov_b32 s{sT1}, {WS_YT + q*65536}\nbuffer_load_dwordx4 {v(16+4*q,4)}, v12, {s4(rWS)}, s{sT1} offen sc1")
        p(f"""s_add_u32 s{sT0}, s{sMX}, {XR}
              v_lshlrev_b32 v14, 4, v1
              v_add_u32 v14, s{sT0}, v14""")
        p(f"""v_bfe_u32 v15, v1, 2, 2
              v_lshl_add_u32 v15, v8, 4, v15
              v_bfe_u32 v11, v1, 1, 1
              v_lshl_add_u32 v15, v11, 3, v15
              v_lshlrev_b32 v15, 6, v15
              v_and_b32 v11, 1, v1
              v_lshl_add_u32 v15, v11, 3, v15
              v_add_u32 v15, s{sT0}, v15""")
        p(f"""s_lshl_b32 s{sT0}, s{sRB}, 7
              s_lshl_b32 s{sT1}, s{sT2}, 5
              s_add_u32 s{sT0}, s{sT0}, s{sT1}
              v_add_u32 v11, s{sT0}, v7
              v_lshlrev_b32 v11, 12, v11
              v_lshl_add_u32 v11, v6, 4, v11
              s_lshl_b32 s{sT0}, s{sHP}, 7
              s_add_u32 s{sT0}, s{sT0}, 2048
              v_add_u32 v11, s{sT0}, v11""")
        for q in range(4):
            p(f"s_waitcnt vmcnt({3-q})\nds_write_b128 v14, {v(16+4*q,4)} offset:{q*1024}")
        for qq in range(4):
            for e in range(2):
                p(f"ds_read_b64_tr_b16 {v(32+4*qq+2*e,2)}, v15 offset:{qq*16 + e*256}")
        for qq in range(4):
            p(f"s_waitcnt lgkmcnt({6-2*qq})\ns_mov_b32 s{sT1}, {qq*8*4096}\nbuffer_store_dwordx4 {v(32+4*qq,4)}, v11, {s4(rOUT)}, s{sT1} offen")
        self.stamp("P")
        self.stamp_store()
        p("s_endpgm")

    def cmul(self, d, x, z, t):
        return [f"v_pk_mul_f32 {v(t,2)}, {v(x+2,2)}, {v(z+2,2)}",
                f"v_pk_mul_f32 {v(t+2,2)}, {v(x,2)}, {v(z+2,2)}",
                f"v_pk_fma_f32 {v(d,2)}, {v(x,2)}, {v(z,2)}, {v(t,2)} neg_lo:[0,0,1] neg_hi:[0,0,1]",
                f"v_pk_fma_f32 {v(d+2,2)}, {v(x+2,2)}, {v(z,2)}, {v(t+2,2)}"]
    def emit_row(self, x, row, t, neg=False):
        n = "-" if neg else ""
        return [f"v_cvt_pk_bf16_f32 v{t}, v{x}, {n}v{x+2}", f"v_cvt_pk_bf16_f32 v{t+1}, v{x+1}, {n}v{x+3}",
                f"ds_write_b64 v28, {v(t,2)} offset:{row*544}"]
    def zip2(self, a, b):
        out = []
        for i in range(max(len(a), len(b))):
            if i < len(a): out.append(a[i])
            if i < len(b): out.append(b[i])
        return out

    def kgen_loads(self):
        p = self.p
        p(f"""s_lshl_b32 s{sCH}, s{sHP}, 6
              s_lshl_b32 s{sT0}, s{sRB}, 2
              s_add_u32 s{sCH}, s{sCH}, s{sT0}
              s_add_u32 s{sCH}, s{sCH}, s{sWV}
              s_lshl_b32 s{sT0}, s{sCH}, 8
              v_lshl_add_u32 v30, v1, 2, s{sT0}
              s_lshl_b32 s{sT0}, s{sCH}, 1
              v_mov_b32 v31, s{sT0}
              global_load_ushort v38, v31, {sp(sLDT)}
              global_load_dword v32, v30, {sp(sARE)}
              global_load_dword v33, v30, {sp(sAIM)}
              global_load_dword v34, v30, {sp(sBRE)}
              global_load_dword v35, v30, {sp(sBIM)}
              global_load_dword v36, v30, {sp(sCRE)}
              global_load_dword v37, v30, {sp(sCIM)}
              global_load_ushort v26, v31, {sp(sDSK)}""")
        p(f"""s_lshr_b32 s{sT0}, s{sWV}, 1
              s_lshl_b32 s{sT1}, s{sHP}, 1
              s_add_u32 s{sT0}, s{sT0}, s{sT1}
              s_lshl_b32 s{sT0}, s{sT0}, 11
              v_lshl_add_u32 v31, v1, 4, s{sT0}
              global_load_dwordx4 v[40:43], v31, {sp(sWP)}
              global_load_dwordx4 v[44:47], v31, {sp(sWP)} offset:1024""")

    def kgen(self):
        p = self.p
        p(f"""s_mul_i32 s{sT0}, s{sWV}, {KGS}
              s_add_u32 s{sT0}, s{sT0}, {XR}
              v_lshl_add_u32 v28, v1, 3, s{sT0}
              v_and_b32 v29, 15, v1
              v_mul_u32_u24 v29, 544, v29
              v_lshrrev_b32 v30, 4, v1
              v_lshl_add_u32 v29, v30, 4, v29
              v_add_u32 v29, s{sT0}, v29
              v_lshl_add_u32 v31, v1, 4, s{sT0}""")
        p(f"""v_bfe_u32 v48, v1, 2, 2
              v_lshrrev_b32 v49, 5, v1
              v_lshl_add_u32 v48, v49, 2, v48
              v_lshlrev_b32 v48, 6, v48
              v_bfe_u32 v49, v1, 4, 1
              v_lshl_add_u32 v48, v49, 5, v48
              v_and_b32 v49, 3, v1
              v_lshl_add_u32 v48, v49, 3, v48
              v_add_u32 v48, s{sT0}, v48
              s_waitcnt vmcnt(0)
              ds_write_b128 v31, v[40:43]
              ds_write_b128 v31, v[44:47] offset:1024""")
        for u in range(2):
            for e in range(2):
                p(f"ds_read_b64_tr_b16 {v(12+4*u+2*e,2)}, v48 offset:{u*1024 + e*512}")
        p(f"""v_lshlrev_b32 v38, 16, v38
              v_lshlrev_b32 v26, 16, v26
              v_mul_f32 v39, s{sL2E}, v38
              v_fma_f32 v40, v38, s{sL2E}, -v39
              v_mov_b32 v41, 0x32a57060
              v_fmac_f32 v40, v38, v41
              v_exp_f32 v39, v39
              v_mul_f32 v40, 0x3f317218, v40
              v_fmac_f32 v39, v39, v40
              v_cvt_pk_bf16_f32 v39, v39, v39
              v_and_b32 v38, 0xffff0000, v39""")
        for k, (src, dst) in enumerate(((32, 64), (33, 66), (34, 68), (35, 70), (36, 72), (37, 74))):
            p(f"v_lshlrev_b32 v{dst}, 16, v{src}\nv_and_b32 v{dst+1}, 0xffff0000, v{src}")
        for r in (64, 66, 68, 70):
            p(f"v_pk_mul_f32 {v(r,2)}, {v(r,2)}, v[38:39] op_sel_hi:[1,0]")
        W, Z1, Z2, Z4, Z8, Z16, Z128 = 76, 80, 84, 88, 92, 96, 100
        p.extend(self.cmul(W, 72, 68, 40))
        p(f"""v_mul_f32 v64, s{sL2E}, v64
              v_mul_f32 v65, s{sL2E}, v65
              v_mul_f32 v66, {INV2PI:#x}, v66
              v_mul_f32 v67, {INV2PI:#x}, v67""")
        for Z, m in ((Z8, 8.0), (Z1, 1.0), (Z128, 128.0)):
            mh = struct.unpack("<I", struct.pack("<f", m))[0]
            p(f"""v_mul_f32 v44, {mh:#x}, v64
                  v_mul_f32 v45, {mh:#x}, v65
                  v_mul_f32 v46, {mh:#x}, v66
                  v_mul_f32 v47, {mh:#x}, v67
                  v_exp_f32 v44, v44
                  v_exp_f32 v45, v45
                  v_fract_f32 v46, v46
                  v_fract_f32 v47, v47
                  v_cos_f32 v{Z}, v46
                  v_cos_f32 v{Z+1}, v47
                  v_sin_f32 v{Z+2}, v46
                  v_sin_f32 v{Z+3}, v47
                  v_pk_mul_f32 {v(Z,2)}, {v(Z,2)}, v[44:45]
                  v_pk_mul_f32 {v(Z+2,2)}, {v(Z+2,2)}, v[44:45]""")
        p.extend(self.zip2(self.cmul(Z16, Z8, Z8, 40), self.cmul(Z2, Z1, Z1, 44)))
        p.extend(self.cmul(Z4, Z2, Z2, 40))
        YA, YB = 104, 108
        p(f"v_mov_b32 v48, 0x3f80\nv_mov_b32 v49, 0x3f80\nds_write_b64 v28, v[48:49]")
        p.extend(self.emit_row(Z8, 1, 50, True)); p.extend(self.emit_row(Z16, 2, 52, True))
        a = self.cmul(YA, Z8, Z16, 40) + self.emit_row(YA, 3, 48, True)
        b = self.cmul(YB, Z16, Z16, 44) + self.emit_row(YB, 4, 50, True)
        p.extend(self.zip2(a, b))
        for k in range(5, 16, 2):
            a = self.cmul(YA, YA, Z16, 40) + self.emit_row(YA, k, 48, True)
            b = (self.cmul(YB, YB, Z16, 44) + self.emit_row(YB, k + 1, 50, True)) if k + 1 < 16 else []
            p.extend(self.zip2(a, b))
        YF = 128
        for s in range(8): p(f"ds_read_b128 {v(YF+4*s,4)}, v29 offset:{s*64}")
        BA = 160
        XA, XB = 104, 108
        AF = 192
        DK = 112
        def mf(t):
            return [f"v_mfma_f32_16x16x32_bf16 {v(DK+4*t,4)}, {v(AF+4*s,4)}, {v(YF+4*s,4)}, {'0' if s == 0 else v(DK+4*t,4)}" for s in range(8)]
        def rd(): return [f"ds_read_b128 {v(AF+4*s,4)}, v29 offset:{s*64}" for s in range(8)]
        p.extend(self.cmul(BA + 4, W, Z128, 40))
        p.extend(self.zip2(self.emit_row(W, 0, 48), self.emit_row(BA + 4, 8, 50)))
        for e in range(1, 8):
            a = self.cmul(XA, W if e == 1 else XA, Z1, 40) + self.emit_row(XA, e, 48)
            b = self.cmul(XB, BA + 4 if e == 1 else XB, Z1, 44) + self.emit_row(XB, 8 + e, 50)
            p.extend(self.zip2(a, b))
        p.extend(rd())
        work = []
        for a_ in range(2, 8): work += self.cmul(BA + 4 * a_, BA + 4 * (a_ - 1), Z128, 40)
        p.extend(work[:8])
        p("s_waitcnt lgkmcnt(0)")
        p.extend(interleave(mf(0), work[8:]))
        p.extend(self.zip2(self.emit_row(BA + 8, 0, 48), self.emit_row(BA + 12, 4, 50)))
        for e in range(1, 4):
            a = self.cmul(XA, BA + 8 if e == 1 else XA, Z2, 40) + self.emit_row(XA, e, 48)
            b = self.cmul(XB, BA + 12 if e == 1 else XB, Z2, 44) + self.emit_row(XB, 4 + e, 50)
            p.extend(self.zip2(a, b))
        for a_ in (4, 6):
            for e in range(2):
                a = self.cmul(XA, BA + 4 * a_ if e == 0 else XA, Z4, 40) + self.emit_row(XA, 8 + 2 * (a_ - 4) + e, 48)
                b = self.cmul(XB, BA + 4 * (a_ + 1) if e == 0 else XB, Z4, 44) + self.emit_row(XB, 8 + 2 * (a_ - 3) + e, 50)
                p.extend(self.zip2(a, b))
        p.extend(rd())
        Z256 = 84
        w2 = self.cmul(Z256, Z128, Z128, 40) + self.cmul(XA, XB, Z128, 44) + self.cmul(XB, XB, Z256, 40)
        p.extend(w2)
        p("s_waitcnt lgkmcnt(0)")
        rows = self.zip2(self.emit_row(XA, 0, 48), self.emit_row(XB, 1, 50)) + self.emit_row(BA + 16, 8, 52)
        for k in (2, 4, 6):
            rows += self.zip2(self.cmul(XA, XA, Z256, 40) + self.emit_row(XA, k, 48), self.cmul(XB, XB, Z256, 44) + self.emit_row(XB, k + 1, 50))
        p.extend(interleave(mf(1), rows))
        p.extend(rd())
        for s, m in enumerate(mf(2)):
            p(f"s_waitcnt lgkmcnt({7-s})\n{m}")
        p(f"""v_cvt_pk_bf16_f32 v20, v{DK+1}, v{DK}
              v_cvt_pk_bf16_f32 v21, v{DK+3}, v{DK+2}
              v_cvt_pk_bf16_f32 v22, v{DK+4}, v{DK+5}
              v_cvt_pk_bf16_f32 v23, v{DK+6}, v{DK+7}
              v_cvt_pk_bf16_f32 v24, v{DK+8}, v{DK+9}
              v_cvt_pk_bf16_f32 v25, v{DK+10}, v{DK+11}""")

    Q, K, V = 64, 96, 128
    def g1_reads(self, s, ks, st):
        F = 160 + 20 * st; sg = s % 3
        xa = (2 + ks) if sg < 2 else (6 + ks); wa = 10 if sg < 2 else 11; o = STG if sg == 1 else 0
        X = lambda rt: f"ds_read_b128 {v(F+4*rt,4)}, v{xa} offset:{o + rt*4096}"
        Wr = lambda seg, e: f"ds_read_b64_tr_b16 {v(F+8+4*seg+2*e,2)}, v{wa} offset:{o + seg*8192 + ks*2048 + e*512}"
        return [X(0), Wr(0, 0), Wr(0, 1), Wr(1, 0), Wr(1, 1), X(1), Wr(2, 0), Wr(2, 1)]
    def g1_mfma(self, st, first):
        F = 160 + 20 * st
        x = lambda rt: v(F + 4 * rt, 4); w = lambda seg: v(F + 8 + 4 * seg, 4)
        def M(acc, a, b): return f"v_mfma_f32_32x32x16_bf16 {v(acc,16)}, {a}, {b}, {'0' if first else v(acc,16)}"
        return [M(self.Q, w(0), x(0)), M(self.K, w(1), x(0)), M(self.Q + 16, w(0), x(1)), M(self.K + 16, w(1), x(1)),
                M(self.V, x(0), w(2)), M(self.V + 16, x(1), w(2))]
    def gemm1(self):
        p = self.p
        p(f"""s_and_b32 s{sT0}, s{sWV}, 1
              s_lshl_b32 s{sT0}, s{sT0}, 13
              v_and_b32 v30, 31, v1
              v_lshl_add_u32 v30, v30, 7, s{sT0}
              v_lshrrev_b32 v31, 5, v1
              v_bfe_u32 v32, v1, 1, 3
              v_xor_b32 v32, v32, v31
              v_lshl_add_u32 v2, v32, 4, v30
              v_xor_b32 v3, 32, v2
              v_xor_b32 v4, 64, v2
              v_xor_b32 v5, 96, v2
              v_add_u32 v6, {2*STG}, v2
              v_add_u32 v7, {2*STG}, v3
              v_add_u32 v8, {2*STG}, v4
              v_add_u32 v9, {2*STG}, v5
              v_bfe_u32 v30, v1, 2, 2
              v_lshl_add_u32 v30, v31, 3, v30
              v_lshlrev_b32 v30, 7, v30
              v_bfe_u32 v32, v1, 3, 1
              s_lshr_b32 s{sT0}, s{sWV}, 1
              v_xor_b32 v32, s{sT0}, v32
              v_lshl_add_u32 v30, v32, 6, v30
              v_bfe_u32 v32, v1, 4, 1
              v_lshl_add_u32 v30, v32, 5, v30
              v_and_b32 v32, 3, v1
              v_lshl_add_u32 v30, v32, 3, v30
              v_add_u32 v10, 16384, v30
              v_add_u32 v11, {2*STG + 16384}, v30
              s_lshl_b32 s{sT0}, s{sHP}, 2
              v_mov_b32 v27, s{sT0}
              v_mov_b32 v30, 0x1000
              v_cmp_eq_u32 vcc, 0, v0
              v_cndmask_b32 v27, v30, v27, vcc
              v_mov_b32 v28, 1""")
        self.stamp("C")
        p("s_waitcnt lgkmcnt(0)\ns_barrier")
        self.stamp("C")
        p.extend(self.g1_reads(0, 0, 0))
        g = 0
        for s in range(16):
            for ks in range(4):
                st = g & 1
                M = self.g1_mfma(st, g == 0)
                if ks < 3:
                    R = self.g1_reads(s, ks + 1, st ^ 1)
                    p(f"s_waitcnt lgkmcnt(5)\n{M[0]}\n{R[0]}\n{R[1]}\ns_waitcnt lgkmcnt(5)\n{M[1]}\n{R[2]}\n{R[3]}\ns_waitcnt lgkmcnt(6)\n{M[2]}\n{R[4]}\n{R[5]}\n{M[3]}\n{R[6]}\n{R[7]}\ns_waitcnt lgkmcnt(8)\n{M[4]}\n{M[5]}")
                else:
                    R = self.g1_reads(s + 1, 0, st ^ 1) if s < 15 else [""] * 8
                    A = f"buffer_atomic_add v28, v27, {s4(rDBG)}, 0 offen sc1" if s == 1 else ""
                    p(f"s_waitcnt lgkmcnt(5)\n{M[0]}\ns_waitcnt lgkmcnt(3)\n{M[1]}\ns_waitcnt lgkmcnt(0)\ns_barrier\n{M[2]}\n{A}\n{R[0]}\n{R[1]}\n{R[2]}\n{M[3]}\n{R[3]}\n{R[4]}\n{R[5]}\n{M[4]}\n{R[6]}\n{R[7]}\n{M[5]}")
                g += 1
        self.stamp("C")

    def softmax2(self, P, OUT, E, T):
        L = []
        mx, mn, t0, t1 = T, T + 2, T + 4, T + 6
        L += [f"v_max3_f32 v{mx}, v{P}, v{P+1}, v{P+2}", f"v_min3_f32 v{mn}, v{P}, v{P+1}, v{P+2}"]
        for k in range(3, 15, 2):
            L += [f"v_max3_f32 v{mx}, v{mx}, v{P+k}, v{P+k+1}", f"v_min3_f32 v{mn}, v{mn}, v{P+k}, v{P+k+1}"]
        L += [f"v_max_f32 v{mx}, v{mx}, v{P+15}", f"v_min_f32 v{mn}, v{mn}, v{P+15}",
              f"v_mov_b32 v{t0}, v{mx}", f"v_mov_b32 v{t1}, v{mn}",
              f"v_permlane32_swap_b32 v{t0}, v{mx}", f"v_permlane32_swap_b32 v{t1}, v{mn}",
              f"v_max_f32 v{mx}, v{mx}, v{t0}", f"v_min_f32 v{mn}, v{mn}, v{t1}",
              f"v_mul_f32 v{mx}, s{sL2E}, v{mx}", f"v_mul_f32 v{mn}, s{sL2E}, v{mn}"]
        for k in range(0, 16, 2):
            L += [f"v_pk_fma_f32 {v(E+k,2)}, {v(P+k,2)}, v[62:63], {v(mx,2)} op_sel_hi:[1,1,0] neg_lo:[0,0,1] neg_hi:[0,0,1]",
                  f"v_pk_fma_f32 {v(P+k,2)}, {v(P+k,2)}, v[62:63], {v(mn,2)} op_sel_hi:[1,1,0] neg_lo:[1,0,0] neg_hi:[1,0,0]"]
        for k in range(16):
            L += [f"v_exp_f32 v{E+k}, v{E+k}", f"v_exp_f32 v{P+k}, v{P+k}"]
        L += [f"v_pk_add_f32 {v(mx,2)}, {v(E,2)}, {v(E+2,2)}", f"v_pk_add_f32 {v(mn,2)}, {v(P,2)}, {v(P+2,2)}"]
        for k in range(4, 16, 2):
            L += [f"v_pk_add_f32 {v(mx,2)}, {v(mx,2)}, {v(E+k,2)}", f"v_pk_add_f32 {v(mn,2)}, {v(mn,2)}, {v(P+k,2)}"]
        L += [f"v_add_f32 v{mx}, v{mx}, v{mx+1}", f"v_add_f32 v{mn}, v{mn}, v{mn+1}",
              f"v_mov_b32 v{t0}, v{mx}", f"v_mov_b32 v{t1}, v{mn}",
              f"v_permlane32_swap_b32 v{t0}, v{mx}", f"v_permlane32_swap_b32 v{t1}, v{mn}",
              f"v_add_f32 v{mx}, v{mx}, v{t0}", f"v_add_f32 v{mn}, v{mn}, v{t1}",
              f"v_rcp_f32 v{mx}, v{mx}", f"v_rcp_f32 v{mn}, v{mn}"]
        for k in range(0, 16, 2):
            L += [f"v_pk_mul_f32 {v(E+k,2)}, {v(E+k,2)}, {v(mx,2)} op_sel_hi:[1,0]", f"v_pk_mul_f32 {v(P+k,2)}, {v(P+k,2)}, {v(mn,2)} op_sel_hi:[1,0]"]
        for k in range(8):
            L += [f"v_cvt_pk_bf16_f32 v{OUT+k}, v{E+2*k}, v{E+2*k+1}", f"v_cvt_pk_bf16_f32 v{OUT+8+k}, v{P+2*k}, v{P+2*k+1}"]
        return L
    def featmap(self, ACC, OUT):
        p = self.p
        B, P, E, T = 160, 176, 208, 240
        for k in range(16): p(f"v_cvt_pk_bf16_f32 v{B+k}, v{ACC+2*k}, v{ACC+2*k+1}")
        for u in range(2):
            for rt in range(2):
                p(f"v_mfma_f32_32x32x16_bf16 {v(P+16*rt,16)}, {v(12+4*u,4)}, {v(B+8*rt+4*u,4)}, {'0' if u == 0 else v(P+16*rt,16)}")
        return self.zip2(self.softmax2(P, OUT, E, T), self.softmax2(P + 16, OUT + 16, E + 16, T + 8))

    def k_epilogue(self):
        p = self.p
        p(f"v_mov_b32 v62, s{sL2E}\nv_mov_b32 v63, s{sL2E}")
        sm = self.featmap(self.K, self.K)
        p(f"""s_lshl_b32 s{sT0}, s{sWV}, 13
              s_add_u32 s{sT0}, s{sT0}, {XR}
              v_and_b32 v40, 5, v1
              v_bfe_u32 v41, v1, 1, 1
              v_lshl_or_b32 v40, v41, 3, v40
              v_bfe_u32 v41, v1, 3, 1
              v_lshl_or_b32 v40, v41, 1, v40
              v_lshrrev_b32 v41, 5, v1
              v_xor_b32 v40, v40, v41
              v_and_b32 v42, 31, v1
              v_lshlrev_b32 v42, 7, v42
              v_lshl_add_u32 v42, v40, 3, v42
              v_add_u32 v28, s{sT0}, v42""")
        for k in range(1, 8):
            p(f"v_xor_b32 v{28+k}, {((k >> 2) * 8 + (k & 3) * 2) * 8}, v28")
        p(f"""v_bfe_u32 v40, v1, 2, 2
              v_lshl_add_u32 v42, v41, 2, v40
              v_lshlrev_b32 v42, 7, v42
              v_and_b32 v43, 1, v40
              v_lshl_or_b32 v43, v41, 2, v43
              v_lshrrev_b32 v40, 1, v40
              v_lshl_or_b32 v43, v40, 3, v43
              v_bfe_u32 v40, v1, 4, 1
              v_and_b32 v44, 3, v1
              v_lshl_or_b32 v40, v40, 2, v44
              v_xor_b32 v43, v43, v40
              s_and_b32 s{sT1}, s{sWV}, 1
              s_lshl_b32 s{sT1}, s{sT1}, 3
              v_xor_b32 v43, s{sT1}, v43
              v_lshl_add_u32 v42, v43, 3, v42
              v_add_u32 v36, s{sT0}, v42
              v_xor_b32 v37, 16, v36
              v_xor_b32 v38, 64, v36
              v_xor_b32 v39, 80, v36""")
        vb = [f"v_cvt_pk_bf16_f32 v{self.V+k}, v{self.V+2*k}, v{self.V+2*k+1}" for k in range(16)]
        p.extend(vb)
        p.extend(sm)
        for rt in range(2):
            for k in range(8):
                p(f"ds_write_b64 v{28+k}, {v(self.K+16*rt+2*k,2)} offset:{rt*4096}")
        PK = 160
        for pn in range(2):
            for rt in range(2):
                for u in range(2):
                    for e in range(2):
                        p(f"ds_read_b64_tr_b16 {v(PK+16*pn+8*rt+4*u+2*e,2)}, v{36+2*pn+e} offset:{rt*4096 + u*2048 + e*1024}")
        KV = 192
        p("v_mov_b32 v224, 0\nv_mov_b32 v225, 0\nv_mov_b32 v226, 0x3f803f80")
        n = 0
        for pn in (1, 0):
            for rt in range(2):
                for u in range(2):
                    f = PK + 16 * pn + 8 * rt + 4 * u
                    if n == 0: p("s_waitcnt lgkmcnt(0)")
                    p(f"v_mfma_f32_32x32x16_bf16 {v(KV+16*pn,16)}, {v(f,4)}, {v(self.V+8*rt+4*u,4)}, {'0' if rt == 0 and u == 0 else v(KV+16*pn,16)}")
                    for d in range(4): p(f"v_dot2c_f32_bf16 v{224+pn}, v{f+d}, v226")
                    n += 1
        p(f"""v_lshlrev_b32 v40, 4, v1
              v_add_u32 v41, s{sT0}, v40
              v_permlane32_swap_b32 v224, v225
              v_add_f32 v224, v224, v225
              v_lshlrev_b32 v42, 2, v1
              v_add_u32 v42, s{sT0}, v42""")
        for q in range(4): p(f"ds_write_b128 v41, {v(KV+16+4*q,4)} offset:{q*1024}")
        p(f"""ds_write_b32 v42, v224 offset:4096
              s_xor_b32 s{sT1}, s{sWV}, 1
              s_lshl_b32 s{sT1}, s{sT1}, 13
              s_add_u32 s{sT1}, s{sT1}, {XR}
              v_add_u32 v41, s{sT1}, v40
              v_and_b32 v42, 31, v1
              v_lshlrev_b32 v43, 2, v42
              v_add_u32 v42, s{sT1}, v43
              s_waitcnt lgkmcnt(0)
              s_barrier""")
        for q in range(4): p(f"ds_read_b128 {v(KV+16+4*q,4)}, v41 offset:{q*1024}")
        p(f"ds_read_b32 v225, v42 offset:{4096+128}")
        p(f"""s_lshl_b32 s{sT0}, s{sHP}, 4
              s_add_u32 s{sT0}, s{sT0}, s{sRB}
              s_lshl_b32 s{sT0}, s{sT0}, 2
              s_and_b32 s{sT1}, s{sWV}, 1
              s_add_u32 s{sT0}, s{sT0}, s{sT1}
              s_and_b32 s{sT1}, s{sWV}, 2
              s_add_u32 s{sT0}, s{sT0}, s{sT1}
              s_mul_i32 s{sT0}, s{sT0}, {KVREC}
              s_add_u32 s{sT0}, s{sT0}, {WS_KV}""")
        for q in range(4):
            p(f"s_waitcnt lgkmcnt({4-q})")
            for k in range(2): p(f"v_pk_add_f32 {v(KV+4*q+2*k,2)}, {v(KV+4*q+2*k,2)}, {v(KV+16+4*q+2*k,2)}")
        for k in range(8): p(f"v_cvt_pk_bf16_f32 v{228+k}, v{KV+2*k}, v{KV+2*k+1}")
        p(f"""buffer_store_dwordx4 v[228:231], v40, {s4(rWS)}, s{sT0} offen sc1
              buffer_store_dwordx4 v[232:235], v40, {s4(rWS)}, s{sT0} offen offset:1024 sc1
              s_waitcnt lgkmcnt(0)
              v_add_f32 v224, v224, v225
              s_mov_b32 exec_hi, 0
              buffer_store_dword v224, v43, {s4(rWS)}, s{sT0} offen offset:2048 sc1
              s_mov_b64 exec, -1""")

    def ktables(self):
        p = self.p
        p(f"""s_mul_i32 s{sT0}, s{sWV}, {TBS}
              s_add_u32 s{sT0}, s{sT0}, {XR}
              v_lshl_add_u32 v28, v1, 4, s{sT0}
              v_mov_b32 v32, 0
              v_mov_b32 v33, 0
              v_mov_b32 v34, 0
              v_mov_b32 v35, 0
              ds_write_b128 v28, v[32:35]
              ds_write_b128 v28, v[32:35] offset:1024
              ds_write_b128 v28, v[32:35] offset:2048
              s_mov_b64 exec, 0x1fff
              ds_write_b128 v28, v[32:35] offset:3072
              s_mov_b64 exec, -1
              v_and_b32 v29, 15, v1
              v_lshrrev_b32 v30, 4, v1""")
        p(f"""v_lshlrev_b32 v31, 8, v30
              v_lshl_add_u32 v31, v29, 4, v31
              s_add_u32 s{sT1}, s{sT0}, {2*(256+16) - 4}
              v_add_u32 v31, s{sT1}, v31
              v_and_b32 v36, 1, v30
              v_lshlrev_b32 v36, 7, v36
              v_lshl_add_u32 v36, v29, 2, v36
              s_add_u32 s{sT1}, s{sT0}, {T_R2 + 120}
              v_add_u32 v36, s{sT1}, v36
              v_lshrrev_b32 v37, 1, v30
              v_lshlrev_b32 v37, 8, v37
              v_lshl_add_u32 v37, v29, 4, v37
              v_and_b32 v39, 1, v30
              v_lshl_add_u32 v37, v39, 3, v37
              s_add_u32 s{sT1}, s{sT0}, {32 - 8}
              v_add_u32 v37, s{sT1}, v37
              v_lshlrev_b32 v38, 7, v30
              v_lshl_add_u32 v38, v29, 1, v38
              s_add_u32 s{sT1}, s{sT0}, {T_R3 + 60}
              v_add_u32 v38, s{sT1}, v38
              v_mov_b32 v39, s{sT0}
              s_mov_b32 exec_hi, 0""")
        def w16(addr, reg, hi, off): return f"ds_write_b16{'_d16_hi' if hi else ''} v{addr}, v{reg} offset:{off}"
        r_of = {0: (22, 0), 1: (22, 1), 2: (23, 0), 3: (23, 1)}
        for dx, r in ((-1, 0), (0, 0), (1, 0), (2, 1), (3, 2), (4, 2), (5, 2), (6, 3)):
            p(w16(31, *r_of[r], T_KA + 2 * ((dx + 16) ^ 1) - 32 + 4))
            p(w16(31, *r_of[r], T_KB + 2 * ((dx + 15) ^ 1) - 32 + 4))
        for r in range(4): p(w16(38, 24 + (r >> 1), r & 1, 32 * r))
        p("s_mov_b64 exec, -1")
        p(f"ds_write_b64 v37, v[20:21] offset:{T_KA + 8}")
        for r, (reg, hi) in enumerate(((20, 1), (20, 0), (21, 1), (21, 0))):
            p(w16(37, reg, hi, T_KB + 2 * ((r + 15) ^ 1) - 32 + 8))
        p(f"s_mov_b32 exec_lo, 0\nds_write_b32 v36, v22\nds_write_b32 v36, v23 offset:64\ns_mov_b32 exec_hi, 1")
        for x in range(511, 515):
            p(w16(39, 24, 0, T_KA + 2 * ((x + 16) ^ 1))); p(w16(39, 24, 0, T_KB + 2 * ((x + 15) ^ 1)))
        p("s_mov_b32 exec_hi, 0x80000000")
        for x in (563, 564):
            p(w16(39, 23, 1, T_KA + 2 * ((x + 16) ^ 1))); p(w16(39, 23, 1, T_KB + 2 * ((x + 15) ^ 1)))
        p("s_mov_b64 exec, -1")

    Y = 96
    BOX = 128
    def conv_setup(self):
        p = self.p
        p(f"""s_mul_i32 s{sT0}, s{sWV}, {TBS}
              s_add_u32 s{sT0}, s{sT0}, {XR}
              v_and_b32 v40, 15, v1
              v_lshrrev_b32 v41, 4, v1
              v_lshlrev_b32 v28, 5, v40
              v_lshl_add_u32 v28, v41, 4, v28
              s_add_u32 s{sT1}, s{sT0}, {T_U + 16 - 512}
              v_add_u32 v28, s{sT1}, v28
              s_add_u32 s{sT1}, s{sT0}, {T_U}
              v_mov_b32 v29, s{sT1}
              v_and_b32 v42, 1, v40
              v_xor_b32 v42, 1, v42
              v_mul_u32_u24 v42, {T_KB - 4}, v42
              v_lshrrev_b32 v43, 1, v40
              v_lshl_add_u32 v42, v43, 2, v42
              v_lshlrev_b32 v43, 4, v41
              v_sub_u32 v42, v42, v43
              s_add_u32 s{sT1}, s{sT0}, {32 - 12}
              v_add_u32 v30, s{sT1}, v42
              v_add_u32 v31, 1024, v30
              v_lshlrev_b32 v43, 2, v41
              v_sub_u32 v43, v40, v43
              s_add_u32 s{sT1}, s{sT0}, {T_R2 + 120 - 24}
              v_lshl_add_u32 v32, v43, 3, s{sT1}
              s_add_u32 s{sT1}, s{sT0}, {T_R3 + 60 - 12}
              v_lshl_add_u32 v33, v43, 2, s{sT1}""")
        for r in range(32): p(f"v_mov_b32 v{self.Y+r}, 0")
    def a_reads(self, dst, c):
        base, o = (30, c // 2) if c <= 504 else (31, c // 2 - 256)
        return [f"ds_read2_b32 {v(dst,2)}, v{base} offset0:{o+3} offset1:{o+2}", f"ds_read2_b32 {v(dst+2,2)}, v{base} offset0:{o+1} offset1:{o}"]
    def f_read(self, dst, x0, tmp):
        if x0 >= 0: return [f"ds_read_b128 {v(dst,4)}, v28 offset:{512 + 2*x0}"]
        return [f"v_add_u32 v{tmp}, {512 + 2*x0}, v28", f"v_max_u32 v{tmp}, v{tmp}, v29", f"ds_read_b128 {v(dst,4)}, v{tmp}"]
    def mm(self, acc, a, b, zero=False):
        return f"v_mfma_f32_16x16x32_bf16 {v(acc,4)}, {v(a,4)}, {v(b,4)}, {'0' if zero else v(acc,4)}"
    def conv_class_reads(self, rho, st):
        F = 160 + 40 * st; c = 16 + 32 * rho
        L = self.a_reads(F + 32, c) + self.f_read(F, -c, 34 + st) + self.f_read(F + 4, 256 - c, 0) + self.a_reads(F + 36, c + 256)
        for P in range(2, 8): L += self.f_read(F + 4 * P, 256 * P - c, 0)
        return L
    def conv_class(self, rho, st, nxt):
        F = 160 + 40 * st; Y = self.Y
        M = []
        for P in range(8):
            M.append(self.mm(Y + 4 * P, F + 32, F + 4 * P))
            if P < 7: M.append(self.mm(Y + 4 * (P + 1), F + 36, F + 4 * P))
        M = [M[0], M[2], M[1], M[4], M[3], M[6], M[5], M[8], M[7], M[10], M[9], M[12], M[11], M[14], M[13]]
        self.p("s_waitcnt lgkmcnt(0)")
        self.p.extend(interleave(M, nxt))
    def conv_coarse(self, st):
        p = self.p; F = 160 + 40 * st; Y = self.Y; BOX = self.BOX
        O = 160 + 40 * (st ^ 1)
        G, A5, A6 = O, O + 24, O + 28
        TP = 40
        R = self.a_reads(A5, 528) + self.a_reads(A6, 576) + self.f_read(G, -24, 36)
        for q in range(1, 6): R += self.f_read(G + 4 * q, 256 * q - 24, 0)
        p.extend(R)
        T3 = 64
        for w in range(2):
            for D in range(3):
                d = TP + 12 * w + 4 * D; o = w + 32 * D
                p(f"ds_read2_b32 {v(d,2)}, v32 offset0:{o+6} offset1:{o+4}\nds_read2_b32 {v(d+2,2)}, v32 offset0:{o+2} offset1:{o}")
        p("s_waitcnt lgkmcnt(12)")
        for P in range(6): p(self.mm(Y + 4 * (P + 2), A5, F + 4 * P))
        for D in range(4):
            d = T3 + 4 * D; o = 16 * D
            p(f"ds_read2_b32 {v(d,2)}, v33 offset0:{o+3} offset1:{o+2}\nds_read2_b32 {v(d+2,2)}, v33 offset0:{o+1} offset1:{o}")
        for P in range(4): p(self.mm(Y + 4 * (P + 4), A6, F + 4 * P))
        p("s_waitcnt lgkmcnt(0)")
        VT = [152, 156, O + 32, O + 36]; VP = [A5, A6];
        def vm(dst, src, box): return self.mm(dst, src, BOX + 4 * box, zero=True)
        def pack(dst, a, b): return [f"v_cvt_pk_bf16_f32 v{dst+r}, v{a+r}, v{b+r}" for r in range(4)]
        jobs = []
        for q in range(6):
            jobs.append((F + 4 * q, 0, F + 4 * q, 1, [(q + D, TP + 4 * (D - 2)) for D in (2, 3, 4) if q + D < 8]))
            jobs.append((G + 4 * q, 2, G + 4 * q, 3, [(q + D, TP + 12 + 4 * (D - 2)) for D in (2, 3, 4) if q + D < 8]))
            if q < 4: jobs.append((F + 4 * q, 4, G + 4 * q, 5, [(q + D, T3 + 4 * (D - 4)) for D in range(4, 8 - q)]))
        n = len(jobs)
        for i in range(n + 2):
            if i < n:
                a, ba, b, bb, _ = jobs[i]; k = i & 1
                p(vm(VT[2 * k], a, ba)); p(vm(VT[2 * k + 1], b, bb))
            if i >= 2:
                for acc, tap in jobs[i - 2][4]: p(self.mm(Y + 4 * acc, VP[i & 1], tap))
            if 1 <= i <= n:
                k = (i - 1) & 1
                p.extend(pack(VP[k], VT[2 * k], VT[2 * k + 1]))
    def conv_out(self):
        p = self.p; Y = self.Y
        p(f"""v_lshrrev_b32 v41, 4, v1
              v_lshlrev_b32 v41, 3, v41
              v_sub_u32 v40, v28, v41""")
        for P in range(8): p(f"ds_read_b64 {v(160+2*P,2)}, v40 offset:{512 + 512*P}")
        p(f"""s_lshl_b32 s{sT0}, s{sCH}, 12
              s_add_u32 s{sT0}, s{sT0}, {WS_YT}
              v_and_b32 v42, 15, v1
              v_lshlrev_b32 v42, 5, v42
              v_bfe_u32 v43, v1, 5, 1
              v_lshl_add_u32 v42, v43, 4, v42
              v_bfe_u32 v43, v1, 4, 1
              v_lshl_add_u32 v42, v43, 9, v42""")
        for P in range(8):
            p(f"s_waitcnt lgkmcnt({7-P})")
            a = 160 + 2 * P
            p(f"""v_lshlrev_b32 v44, 16, v{a}
                  v_and_b32 v45, 0xffff0000, v{a}
                  v_lshlrev_b32 v46, 16, v{a+1}
                  v_and_b32 v47, 0xffff0000, v{a+1}
                  v_pk_fma_f32 {v(Y+4*P,2)}, v[44:45], v[26:27], {v(Y+4*P,2)} op_sel_hi:[1,0,1]
                  v_pk_fma_f32 {v(Y+4*P+2,2)}, v[46:47], v[26:27], {v(Y+4*P+2,2)} op_sel_hi:[1,0,1]
                  v_cvt_pk_bf16_f32 v{176+2*P}, v{Y+4*P}, v{Y+4*P+1}
                  v_cvt_pk_bf16_f32 v{177+2*P}, v{Y+4*P+2}, v{Y+4*P+3}""")
        for P in range(0, 8, 2):
            a = 176 + 2 * P
            p(f"v_permlane16_swap_b32 v{a}, v{a+2}\nv_permlane16_swap_b32 v{a+1}, v{a+3}")
            p(f"buffer_store_dwordx4 {v(a,4)}, v42, {s4(rWS)}, s{sT0} offen offset:{512*P} sc1")

    def o_phase(self):
        p = self.p; PH = self.Q
        KF, ZR, N = 200, 216, 160
        p(f"""s_lshr_b32 s{sT0}, s{sWV}, 1
              s_lshl_b32 s{sT1}, s{sT0}, 12
              s_add_u32 s{sT1}, s{sT1}, {KVF}
              v_lshl_add_u32 v40, v1, 4, s{sT1}
              s_lshl_b32 s{sT1}, s{sT0}, 7
              s_add_u32 s{sT1}, s{sT1}, {ZF}
              v_lshrrev_b32 v41, 5, v1
              v_lshl_add_u32 v41, v41, 4, s{sT1}""")
        for f in range(4): p(f"ds_read_b128 {v(KF+4*f,4)}, v40 offset:{f*1024}")
        for f in range(4): p(f"ds_read_b128 {v(ZR+4*f,4)}, v41 offset:{f*32}")
        p(f"""v_mov_b32 v232, 0
              v_mov_b32 v234, 0
              s_lshl_b32 s{sT1}, s{sRB}, 4
              s_add_u32 s{sT1}, s{sT1}, s{sHP}
              s_lshl_b32 s{sT1}, s{sT1}, 14
              s_lshl_b32 s{sT0}, s{sT0}, 11
              s_add_u32 s{sT1}, s{sT1}, s{sT0}
              s_and_b32 s{sT0}, s{sWV}, 1
              s_lshl_b32 s{sT0}, s{sT0}, 13
              s_add_u32 s{sT1}, s{sT1}, s{sT0}
              s_add_u32 s{sT1}, s{sT1}, {WS_O}
              v_lshlrev_b32 v40, 4, v1""")
        for f in range(4):
            p(f"s_waitcnt lgkmcnt({7-f})")
            for rt in range(2):
                p(f"v_mfma_f32_32x32x16_bf16 {v(N+16*rt,16)}, {v(KF+4*f,4)}, {v(PH+16*rt+4*f,4)}, {'0' if f == 0 else v(N+16*rt,16)}")
        p("s_waitcnt lgkmcnt(0)")
        for d in range(16):
            for rt in range(2): p(f"v_dot2c_f32_bf16 v{232+2*rt}, v{PH+16*rt+d}, v{ZR+d}")
        p(f"""v_mov_b32 v236, v232
              v_mov_b32 v237, v234
              v_permlane32_swap_b32 v236, v232
              v_permlane32_swap_b32 v237, v234
              v_add_f32 v232, v232, v236
              v_add_f32 v234, v234, v237
              v_add_f32 v232, 0x358637bd, v232
              v_add_f32 v234, 0x358637bd, v234
              v_rcp_f32 v232, v232
              v_rcp_f32 v234, v234""")
        for rt in range(2):
            for k in range(8):
                p(f"v_pk_mul_f32 {v(N+16*rt+2*k,2)}, {v(N+16*rt+2*k,2)}, {v(232+2*rt,2)} op_sel_hi:[1,0]")
            for k in range(8):
                p(f"v_cvt_pk_bf16_f32 v{KF+8*rt+k}, v{N+16*rt+2*k}, v{N+16*rt+2*k+1}")
            p(f"s_add_u32 s{sT0}, s{sT1}, {rt*4096}")
            for u in range(2):
                p(f"buffer_store_dwordx4 {v(KF+8*rt+4*u,4)}, v40, {s4(rWS)}, s{sT0} offen offset:{u*1024} sc1")

    def gemm2(self):
        p = self.p
        ACC, OF, WF, ND = 64, 96, 224, 32
        p(f"""s_lshl_b32 s{sT3}, s{sRB2}, 18
              s_lshl_b32 s{sT0}, s{sWV}, 12
              s_add_u32 s{sT3}, s{sT3}, s{sT0}
              s_add_u32 s{sT3}, s{sT3}, {WS_O}
              v_lshlrev_b32 v40, 4, v1
              v_and_b32 v41, 15, v1
              v_lshlrev_b32 v41, 2, v41
              s_lshl_b32 s{sT0}, s{sRB2}, 8
              s_add_u32 s{sT0}, s{sT0}, {WS_FL + 4096}
              v_add_u32 v41, s{sT0}, v41""")
        p(f"""v_bfe_u32 v30, v1, 2, 2
              v_lshrrev_b32 v31, 5, v1
              v_lshl_add_u32 v30, v31, 2, v30
              v_lshlrev_b32 v30, 7, v30
              v_bfe_u32 v32, v1, 3, 1
              v_lshl_add_u32 v30, v32, 6, v30
              v_bfe_u32 v32, v1, 4, 1
              v_lshl_add_u32 v30, v32, 5, v30
              v_and_b32 v32, 3, v1
              v_lshl_add_u32 v2, v32, 3, v30
              v_xor_b32 v3, 64, v2
              v_add_u32 v4, 0x10000, v2
              v_add_u32 v5, 0x10000, v3
              v_add_u32 v6, {KVF}, v2
              v_add_u32 v7, {KVF}, v3""")
        self.poll(rWS, 41, 42, 1)
        self.stamp("C")
        def oload(n):
            pos, ks = n >> 2, n & 3
            L = []
            if ks == 0: L += [f"s_add_u32 s{sT0}, s{sCB}, {pos}", f"s_and_b32 s{sT0}, s{sT0}, 15", f"s_lshl_b32 s{sT0}, s{sT0}, 14", f"s_add_u32 s{sKX}, s{sT0}, s{sT3}"]
            L.append(f"buffer_load_dwordx4 {v(OF+4*(n % ND),4)}, v40, {s4(rWS)}, s{sKX} offen offset:{ks*1024} sc1")
            return L
        for n in range(ND): p.extend(oload(n))
        p("s_barrier")
        def wreads(n):
            pos, ks = n >> 2, n & 3
            b, o = (2, pos * 8192) if pos < 8 else (4, (pos - 8) * 8192) if pos < 15 else (6, 0)
            f = WF + 8 * (n & 1)
            return [f"ds_read_b64_tr_b16 {v(f+4*ct+2*e,2)}, v{b+ct} offset:{o + ks*2048 + e*1024}" for ct in range(2) for e in range(2)]
        p.extend(wreads(0))
        for n in range(64):
            R = wreads(n + 1) if n < 63 else []
            f = WF + 8 * (n & 1); o = OF + 4 * (n % ND)
            left = min(ND - 1, 63 - n)
            p(f"s_waitcnt vmcnt({left}) lgkmcnt(2)")
            p(f"v_mfma_f32_32x32x16_bf16 {v(ACC,16)}, {v(f,4)}, {v(o,4)}, {'0' if n == 0 else v(ACC,16)}")
            p.extend(R[:2])
            p(f"s_waitcnt lgkmcnt({2 if R else 0})")
            p(f"v_mfma_f32_32x32x16_bf16 {v(ACC+16,16)}, {v(f+4,4)}, {v(o,4)}, {'0' if n == 0 else v(ACC+16,16)}")
            p.extend(R[2:])
            if n + ND < 64: p.extend(oload(n + ND))
        self.stamp("C")
        p(f"""s_lshl_b32 s{sT0}, s{sRB2}, 7
              s_lshl_b32 s{sT1}, s{sWV}, 5
              s_add_u32 s{sT0}, s{sT0}, s{sT1}
              v_and_b32 v41, 31, v1
              v_add_u32 v41, s{sT0}, v41
              v_lshlrev_b32 v41, 12, v41
              v_lshl_add_u32 v41, v31, 4, v41
              s_lshl_b32 s{sT0}, s{sCB}, 7""")
        for ct in range(2):
            for k in range(8): p(f"v_cvt_pk_bf16_f32 v{96+8*ct+k}, v{ACC+16*ct+2*k}, v{ACC+16*ct+2*k+1}")
            for k in (0, 4):
                a = 96 + 8 * ct + k
                p(f"v_permlane32_swap_b32 v{a}, v{a+2}\nv_permlane32_swap_b32 v{a+1}, v{a+3}")
                p(f"buffer_store_dwordx4 {v(a,4)}, v41, {s4(rOUT)}, s{sT0} offen offset:{ct*64 + k*8}")

    def box_table(self):
        boxes = [(4, 1, -16), (8, 2, -16), (12, 1, -24), (16, 2, -24), (8, 3, -16), (16, 4, -24)]
        L = [".p2align 6", "L_box:"]
        for off, w, x0 in boxes:
            for l in range(64):
                r, g = l & 15, l >> 4
                val = [0x3f80 if (r - off - w) <= (x0 + 8 * g + j) <= (r - off + w) else 0 for j in range(8)]
                L.append(".long " + ", ".join(f"{val[2*d] | (val[2*d+1] << 16):#x}" for d in range(4)))
        return "\n".join(L)

    def consumer(self):
        p = self.p; c = self.c
        self.stamp("C")
        self.kgen_loads()
        self.kgen()
        self.gemm1()
        self.k_epilogue()
        self.stamp("C")
        sm = self.featmap(self.Q, self.Q)
        p(f"""s_getpc_b64 {sp(sE0)}
              L_pc:
              s_add_u32 s{sE0}, s{sE0}, L_box-L_pc
              s_addc_u32 s{sE0+1}, s{sE0+1}, 0
              v_lshlrev_b32 v40, 4, v1
              v_add_u32 v41, 4096, v40""")
        for b in range(6):
            p(f"global_load_dwordx4 {v(self.BOX+4*b,4)}, v{40 + b//4}, {sp(sE0)} offset:{(b % 4)*1024}")
        p.extend(sm)
        p("s_waitcnt vmcnt(0)")
        self.stamp("C")
        p("s_barrier")
        self.ktables()
        self.conv_setup()
        p("s_waitcnt lgkmcnt(0)\ns_barrier")
        self.stamp("C")
        order = list(range(1, 8)) + [0]
        st = 0
        p.extend(self.conv_class_reads(order[0], st))
        def run(i):
            nonlocal st
            nxt = self.conv_class_reads(order[i + 1], st ^ 1) if (i + 1 < 8 and i + 1 != c.conv_split) else []
            self.conv_class(order[i], st, nxt)
            if nxt: st ^= 1
        for i in range(c.conv_split): run(i)
        self.stamp("C")
        p("s_barrier")
        self.stamp("C")
        self.o_phase()
        if c.conv_split < 8:
            st = 1
            st = 0
            p.extend(self.conv_class_reads(order[c.conv_split], st))
        p("s_waitcnt vmcnt(0)")
        self.stamp("C")
        p("s_barrier")
        for i in range(c.conv_split, 8): run(i)
        self.conv_coarse(st)
        self.conv_out()
        self.stamp("C")
        self.gemm2()
        self.stamp("C")
        self.stamp_store()
        p("L_end:\ns_endpgm")

    def build(self):
        self.prologue()
        self.consumer()
        self.producer()
        body = self.p.finalize()
        hdr = open("concat_heads__linear_kernel_hedgehog__ssm_conv_s4__prompt.s.ref").read().split("; Override launch")[0]
        return f"""{hdr}; @launch grid=(256,1,1) block=(512,1,1) lds={LDS_BYTES}
.amdgcn_target "amdgcn-amd-amdhsa--gfx950"
.text
.globl {NAME}
.p2align 8
.type {NAME},@function
{NAME}:
{body}
{self.box_table()}
.section .rodata,"a"
.p2align 6
.amdhsa_kernel {NAME}
  .amdhsa_next_free_vgpr 256
  .amdhsa_next_free_sgpr 102
  .amdhsa_accum_offset 256
  .amdhsa_group_segment_fixed_size 0
  .amdhsa_kernarg_size 128
  .amdhsa_user_sgpr_count 2
  .amdhsa_user_sgpr_kernarg_segment_ptr 1
  .amdhsa_system_sgpr_workgroup_id_x 1
.end_amdhsa_kernel
"""

if __name__ == "__main__":
    cfg = Cfg()
    out = sys.argv[1]
    for a in sys.argv[2:]:
        k, val = a.split("=")
        setattr(cfg, k, eval(val))
    open(out, "w").write(Gen(cfg).build())
```

```python
import sys, struct
from asmgen import Prog, interleave

NAME = "concat_heads__linear_kernel_hedgehog__ssm_conv_s4__prompt_kernel"

class Cfg:
    rot = (2, 4)
    stamps = False
    conv_split = 5
    spin = 1 << 18
    fine = ''

WS_UT, WS_YT, WS_O, WS_KV, WS_FL, WS_ST = 0, 4 << 20, 8 << 20, 12 << 20, 16 << 20, 17 << 20
WS_SIZE = 32 << 20
KVREC = 2176
STG = 40960
XR = 3 * STG
KGS = 8704
WPHI = XR + 4 * KGS
TBS = 7424
T_KA, T_KB, T_R2, T_R3, T_U = 0, 1216, 2432, 2944, 3264
KVF = XR + 4 * TBS
ZF = KVF + 8192
LDS_BYTES = 163840
LOG2E = 0x3fb8aa3b
INV2PI = 0x3e22f983

sX, sWQ, sWP, sWO, sU, sARE, sAIM, sBRE, sBIM, sCRE, sCIM, sLDT, sDSK, sOUT, sDBG, sWS = range(4, 36, 2)
rX, rW, rWS, rOUT, rWO, rU, rDBG = 36, 40, 44, 48, 52, 56, 60
sXCD, sJ, sRB, sHP, sRB2, sCB, sWV, sROT = range(64, 72)
sT0, sT1, sT2, sT3, sKX, sKW, sMX, sMW = range(72, 80)
sWOF = 80
sCH, sL2E, sSPIN = 86, 87, 88
sE0 = 90
sSTAMP = 92

def sp(r): return f"s[{r}:{r+1}]"
def s4(r): return f"s[{r}:{r+3}]"
def v(r, n=1): return f"v{r}" if n == 1 else f"v[{r}:{r+n-1}]"

def srd(p, r, ptr, size):
    p(f"s_mov_b32 s{r}, s{ptr}\ns_mov_b32 s{r+1}, s{ptr+1}\ns_mov_b32 s{r+2}, {size:#x}\ns_mov_b32 s{r+3}, 0x20000")

class Gen:
    def __init__(self, cfg):
        self.c = cfg; self.p = Prog(); self.nlab = 0; self.nst = {"C": 0, "P": 0}
    def lab(self, s):
        self.nlab += 1; return f"L{s}_{self.nlab}"
    def stamp(self, role, tag=None):
        if not self.c.stamps: return
        if tag and tag not in self.c.fine: return
        i = self.nst[role]; self.nst[role] += 1
        self.p(f"s_memrealtime {sp(sSTAMP)}\ns_memtime {sp(sSTAMP+2)}\ns_waitcnt lgkmcnt(0)\nv_writelane_b32 v255, s{sSTAMP}, {i}\nv_writelane_b32 v255, s{sSTAMP+2}, {32+i}")
    def stamp_store(self):
        if not self.c.stamps: return
        p = self.p
        p(f"s_lshl_b32 s{sT0}, s2, 3\ns_add_u32 s{sT0}, s{sT0}, s{sWV}\ns_lshl_b32 s{sT0}, s{sT0}, 8\ns_add_u32 s{sT0}, s{sT0}, {WS_ST}")
        p(f"v_lshlrev_b32 v254, 2, v1\nbuffer_store_dword v255, v254, {s4(rWS)}, s{sT0} offen")

    def prologue(self):
        p = self.p; c = self.c
        p(f"s_cmp_ge_u32 s2, 256\ns_cbranch_scc1 L_end")
        p(f"s_load_dwordx16 s[4:19], s[0:1], 0\ns_load_dwordx16 s[20:35], s[0:1], 64")
        p(f"v_lshrrev_b32 v2, 6, v0\nv_and_b32 v1, 63, v0")
        p(f"s_and_b32 s{sXCD}, s2, 7\ns_lshr_b32 s{sJ}, s2, 3")
        p(f"v_readfirstlane_b32 s{sWV}, v2")
        p(f"s_and_b32 s{sT0}, s{sXCD}, 1\ns_lshl_b32 s{sT0}, s{sT0}, 3\ns_and_b32 s{sRB}, s{sJ}, 7\ns_add_u32 s{sRB}, s{sRB}, s{sT0}")
        p(f"s_lshr_b32 s{sT0}, s{sXCD}, 1\ns_lshl_b32 s{sT0}, s{sT0}, 2\ns_lshr_b32 s{sHP}, s{sJ}, 3\ns_add_u32 s{sHP}, s{sHP}, s{sT0}")
        p(f"s_lshl_b32 s{sT0}, s{sXCD}, 1\ns_lshr_b32 s{sRB2}, s{sJ}, 4\ns_add_u32 s{sRB2}, s{sRB2}, s{sT0}\ns_and_b32 s{sCB}, s{sJ}, 15")
        p(f"s_mul_i32 s{sROT}, s{sRB}, {c.rot[0]}\ns_mul_i32 s{sT0}, s{sHP}, {c.rot[1]}\ns_add_u32 s{sROT}, s{sROT}, s{sT0}")
        p(f"s_mov_b32 s{sL2E}, {LOG2E:#x}")
        if c.stamps: p("v_mov_b32 v255, 0")
        p("s_waitcnt lgkmcnt(0)")
        srd(p, rX, sX, 4 << 20); srd(p, rW, sWQ, 6 << 20); srd(p, rWS, sWS, WS_SIZE); srd(p, rOUT, sOUT, 8 << 20)
        srd(p, rWO, sWO, 2 << 20); srd(p, rU, sU, 4 << 20); srd(p, rDBG, sDBG, 256)
        p(f"s_cmp_ge_u32 s{sWV}, 4\ns_cbranch_scc1 L_P")

    def poll(self, srdreg, vaddr, vtmp, want, soff="0"):
        p = self.p; L = self.lab("poll"); D = self.lab("pdone")
        p(f"s_mov_b32 s{sSPIN}, 0\n{L}:\nbuffer_load_dword v{vtmp}, v{vaddr}, {s4(srdreg)}, {soff} offen sc1")
        p(f"s_add_u32 s{sSPIN}, s{sSPIN}, 1\ns_waitcnt vmcnt(0)\nv_cmp_gt_u32 vcc, {want}, v{vtmp}")
        p(f"s_cmp_ge_u32 s{sSPIN}, {self.c.spin}\ns_cbranch_scc1 {D}\ns_cbranch_vccnz {L}\n{D}:")

    def dma_slab(self, s):
        st = (s % 3) * STG
        L = [f"s_add_u32 s{sT0}, s{sROT}, {s}", f"s_and_b32 s{sT0}, s{sT0}, 15", f"s_lshl_b32 s{sKX}, s{sT0}, 7", f"s_mul_i32 s{sKW}, s{sT0}, {64*6144}"]
        for i in range(4):
            L += [f"s_add_u32 m0, s{sMX}, {st + i*1024}", f"s_add_u32 s{sT1}, s{sKX}, {i*16384}",
                  f"buffer_load_dwordx4 v{2 + (i & 1)}, {s4(rX)}, s{sT1} offen lds"]
        for i in range(6):
            L += [f"s_add_u32 m0, s{sMW}, {st + i*1024}", f"s_add_u32 s{sT1}, s{sKW}, s{sWOF+i}",
                  f"buffer_load_dwordx4 v4, {s4(rW)}, s{sT1} offen lds"]
        return L
    def dma_wo(self, pos):
        dst = pos * 8192 if pos < 15 else KVF
        L = [f"s_add_u32 s{sT0}, s{sCB}, {pos}", f"s_and_b32 s{sT0}, s{sT0}, 15", f"s_lshl_b32 s{sT0}, s{sT0}, 17"]
        for i in range(2):
            L += [f"s_add_u32 m0, s{sT3}, {dst + i*1024}", f"s_add_u32 s{sT1}, s{sT0}, {i*16384}",
                  f"buffer_load_dwordx4 v5, {s4(rWO)}, s{sT1} offen lds"]
        return L
    def set_flag(self, off_code):
        p = self.p
        p(off_code)
        p(f"v_mov_b32 v14, s{sT0}\nv_mov_b32 v15, 1\ns_mov_b64 exec, 1\nbuffer_store_dword v15, v14, {s4(rWS)}, 0 offen sc1\ns_mov_b64 exec, -1")

    def producer(self):
        p = self.p; c = self.c
        p("L_P:")
        self.stamp("P")
        p(f"s_sub_u32 s{sT2}, s{sWV}, 4")
        p(f"""v_lshrrev_b32 v6, 3, v1
              v_and_b32 v7, 7, v1
              v_lshrrev_b32 v8, 4, v1
              s_lshl_b32 s{sT0}, s{sRB}, 7
              s_lshl_b32 s{sT1}, s{sT2}, 5
              s_add_u32 s{sT0}, s{sT0}, s{sT1}
              v_add_u32 v9, s{sT0}, v6
              v_lshlrev_b32 v9, 11, v9
              v_xor_b32 v10, v7, v8
              v_lshl_add_u32 v2, v10, 4, v9
              v_xor_b32 v10, 4, v10
              v_lshl_add_u32 v3, v10, 4, v9
              v_and_b32 v10, 1, v8
              v_lshlrev_b32 v10, 2, v10
              v_xor_b32 v10, v10, v7
              v_lshlrev_b32 v10, 4, v10
              v_mul_u32_u24 v11, 6144, v6
              s_lshl_b32 s{sT0}, s{sHP}, 7
              v_add3_u32 v4, v10, v11, s{sT0}
              s_lshl_b32 s{sMX}, s{sT2}, 12
              s_mul_i32 s{sMW}, s{sT2}, 6144
              s_add_u32 s{sMW}, s{sMW}, 16384""")
        for i in range(6):
            p(f"""s_mul_i32 s{sT0}, s{sT2}, 6
                  s_add_u32 s{sT0}, s{sT0}, {i}
                  s_lshr_b32 s{sT1}, s{sT0}, 3
                  s_lshl_b32 s{sT1}, s{sT1}, 11
                  s_and_b32 s{sT0}, s{sT0}, 7
                  s_mul_i32 s{sT0}, s{sT0}, {8*6144}
                  s_add_u32 s{sWOF+i}, s{sT0}, s{sT1}""")
        self.stamp('P', 'p')
        p.extend(self.dma_slab(0))
        self.stamp('P', 'p')
        p(f"""s_lshl_b32 s{sT0}, s{sHP}, 7
              v_lshl_add_u32 v12, v7, 4, v9
              v_add_u32 v12, s{sT0}, v12""")
        for i in range(4):
            p(f"s_add_u32 m0, s{sMX}, {2*STG + i*1024}\ns_mov_b32 s{sT1}, {i*16384}\nbuffer_load_dwordx4 v12, {s4(rU)}, s{sT1} offen lds")
        p.extend(self.dma_slab(1))
        self.stamp('P', 'p')
        p(f"""s_lshl_b32 s{sT0}, s{sT2}, 4
              v_add_u32 v11, s{sT0}, v6
              v_lshlrev_b32 v11, 11, v11
              s_lshl_b32 s{sT0}, s{sCB}, 7
              v_add3_u32 v5, v10, v11, s{sT0}
              s_lshl_b32 s{sT3}, s{sT2}, 11""")
        p(f"""v_and_b32 v13, 15, v1
              v_lshrrev_b32 v14, 2, v13
              v_lshl_add_u32 v14, v8, 3, v14
              v_lshlrev_b32 v14, 7, v14
              v_and_b32 v15, 3, v1
              v_lshl_add_u32 v14, v15, 3, v14
              s_add_u32 s{sT0}, s{sMX}, {2*STG}
              v_add_u32 v14, s{sT0}, v14
              v_lshlrev_b32 v15, 6, v13
              v_lshl_add_u32 v15, v8, 4, v15
              s_lshl_b32 s{sT0}, s{sHP}, 4
              s_add_u32 s{sT0}, s{sT0}, s{sRB}
              s_lshl_b32 s{sT0}, s{sT0}, 14
              s_add_u32 s{sT0}, s{sT0}, s{sMX}
              v_add_u32 v15, s{sT0}, v15
              s_waitcnt vmcnt(10)""")
        self.stamp('P', 'p')
        for q in range(4):
            for e in range(2):
                p(f"ds_read_b64_tr_b16 {v(16+4*q+2*e,2)}, v14 offset:{q*32 + e*512}")
        for q in range(4):
            p(f"s_waitcnt lgkmcnt({6-2*q})\nbuffer_store_dwordx4 {v(16+4*q,4)}, v15, {s4(rWS)}, 0 offen offset:{q*1024} sc1")
        p(f"""s_lshl_b32 s{sT0}, s{sHP}, 8
              s_lshl_b32 s{sT1}, s{sRB}, 2
              s_add_u32 s{sT0}, s{sT0}, s{sT1}
              s_add_u32 s{sT0}, s{sT0}, {WS_FL}
              v_mov_b32 v240, s{sT0}
              s_lshl_b32 s{sT0}, s{sRB}, 8
              s_lshl_b32 s{sT1}, s{sHP}, 2
              s_add_u32 s{sT0}, s{sT0}, s{sT1}
              s_add_u32 s{sT0}, s{sT0}, {WS_FL + 4096}
              v_mov_b32 v241, s{sT0}
              v_mov_b32 v243, 0x40000000
              v_cmp_eq_u32 vcc, 256, v0
              v_cndmask_b32 v240, v243, v240, vcc
              v_cndmask_b32 v241, v243, v241, vcc
              v_add_u32 v242, 8192, v240
              v_mov_b32 v243, 0
              v_mov_b32 v244, 1
              buffer_store_dword v243, v240, {s4(rWS)}, 0 offen sc1
              buffer_store_dword v243, v241, {s4(rWS)}, 0 offen sc1
              buffer_store_dword v243, v242, {s4(rWS)}, 0 offen sc1""")
        p(f"""v_lshlrev_b32 v13, 2, v13
              s_lshl_b32 s{sT0}, s{sHP}, 6
              s_lshl_b32 s{sT1}, s{sT2}, 4
              s_add_u32 s{sT0}, s{sT0}, s{sT1}
              v_add_u32 v14, s{sT0}, v8
              v_lshlrev_b32 v14, 12, v14
              v_lshl_add_u32 v14, v13, 2, v14
              s_lshl_b32 s{sT0}, s{sRB}, 8
              v_add_u32 v14, s{sT0}, v14
              v_bfe_u32 v15, v1, 2, 2
              v_mul_u32_u24 v15, {TBS}, v15
              v_lshl_add_u32 v15, v8, 6, v15
              v_and_b32 v12, 3, v1
              v_lshl_add_u32 v15, v12, 4, v15
              s_lshl_b32 s{sT0}, s{sT2}, 10
              s_add_u32 s{sT0}, s{sT0}, {XR + T_U + 16}
              v_add_u32 v15, s{sT0}, v15""")
        self.stamp("P")
        p("s_barrier")
        for s in range(16):
            if s == 11: p(f"buffer_load_dword v12, v13, {s4(rDBG)}, 0 offen sc1")
            if s + 2 < 16: p.extend(self.dma_slab(s + 2))
            if s == 12:
                for q in range(4):
                    p(f"s_mov_b32 s{sT1}, {WS_UT + q*16384}\nbuffer_load_dwordx4 {v(16+4*q,4)}, v14, {s4(rWS)}, s{sT1} offen sc1")
            if s == 14:
                for pos in range(5, 10): p.extend(self.dma_wo(pos))
            if s == 15:
                for pos in range(10, 15): p.extend(self.dma_wo(pos))
            if s < 15: p(f"s_waitcnt vmcnt({10 + {0: 7, 12: 4}.get(s, 0)})")
            if s == 11:
                L = self.lab("cntok")
                p(f"v_cmp_gt_u32 vcc, 16, v12\ns_cbranch_vccz {L}")
                self.poll(rDBG, 13, 12, 16)
                p(f"{L}:")
            p("s_barrier")
        self.stamp("P")
        for pos in range(0, 5): p.extend(self.dma_wo(pos))
        p("s_barrier")
        p("s_barrier")
        p(f"buffer_store_dword v244, v240, {s4(rWS)}, 0 offen sc1")
        self.stamp("P")
        for q in range(4):
            p(f"ds_write_b128 v15, {v(16+4*q,4)} offset:{q*256}")
        p("s_waitcnt lgkmcnt(0)\ns_barrier")
        p(f"s_lshl_b32 s{sT0}, s{sHP}, 8\ns_add_u32 s{sT0}, s{sT0}, {WS_FL}\nv_add_u32 v12, s{sT0}, v13")
        self.poll(rWS, 12, 14, 1)
        self.stamp("P")
        p(f"""s_mul_i32 s{sT3}, s{sHP}, {16*4*KVREC}
              s_mul_i32 s{sT0}, s{sT2}, {KVREC}
              s_add_u32 s{sT3}, s{sT3}, s{sT0}
              s_add_u32 s{sT3}, s{sT3}, {WS_KV}
              v_lshlrev_b32 v12, 4, v1
              v_and_b32 v14, 31, v1
              v_lshlrev_b32 v14, 2, v14
              v_mov_b32 v10, 0x3f80
              v_mov_b32 v11, 0x3f800000""")
        D0 = 32
        for m in range(16):
            p(f"""s_add_u32 s{sT0}, s{sRB}, {m}
                  s_and_b32 s{sT0}, s{sT0}, 15
                  s_mul_i32 s{sT0}, s{sT0}, {4*KVREC}
                  s_add_u32 s{sT0}, s{sT0}, s{sT3}
                  buffer_load_dwordx4 {v(D0+8*m,4)}, v12, {s4(rWS)}, s{sT0} offen sc1
                  buffer_load_dwordx4 {v(D0+8*m+4,4)}, v12, {s4(rWS)}, s{sT0} offen offset:1024 sc1
                  buffer_load_dword v{160+m}, v14, {s4(rWS)}, s{sT0} offen offset:2048 sc1""")
        for r in range(17): p(f"v_mov_b32 v{176+r}, 0")
        for m in range(16):
            p(f"s_waitcnt vmcnt({3*(15-m)})")
            for d in range(8):
                p(f"v_dot2c_f32_bf16 v{176+2*d}, v{D0+8*m+d}, v10\nv_dot2c_f32_bf16 v{177+2*d}, v{D0+8*m+d}, v11")
            p(f"v_add_f32 v192, v192, v{160+m}")
        for d in range(8): p(f"v_cvt_pk_bf16_f32 v{16+d}, v{176+2*d}, v{177+2*d}")
        p(f"""v_cvt_pk_bf16_f32 v24, v192, v192
              s_lshl_b32 s{sT0}, s{sT2}, 11
              s_add_u32 s{sT0}, s{sT0}, {KVF}
              v_add_u32 v12, s{sT0}, v12
              ds_write_b128 v12, v[16:19]
              ds_write_b128 v12, v[20:23] offset:1024
              v_and_b32 v14, 0x13, v1
              v_bfe_u32 v25, v1, 2, 1
              v_lshl_or_b32 v14, v25, 3, v14
              v_bfe_u32 v25, v1, 3, 1
              v_lshl_or_b32 v14, v25, 2, v14
              v_lshlrev_b32 v14, 1, v14
              s_lshl_b32 s{sT0}, s{sT2}, 6
              s_add_u32 s{sT0}, s{sT0}, {ZF}
              v_add_u32 v14, s{sT0}, v14
              s_mov_b32 exec_hi, 0
              ds_write_b16 v14, v24
              s_mov_b64 exec, -1
              s_waitcnt lgkmcnt(0)""")
        self.stamp("P")
        p("s_barrier")
        p("s_barrier")
        p(f"buffer_store_dword v244, v241, {s4(rWS)}, 0 offen sc1\ns_lshl_b32 s{sT3}, s{sT2}, 11")
        p.extend(self.dma_wo(15))
        p("s_waitcnt vmcnt(0)")
        self.stamp("P")
        p("s_barrier")
        p(f"buffer_store_dword v244, v242, {s4(rWS)}, 0 offen sc1")
        p(f"s_lshl_b32 s{sT0}, s{sHP}, 8\ns_add_u32 s{sT0}, s{sT0}, {WS_FL + 8192}\nv_add_u32 v12, s{sT0}, v13")
        self.poll(rWS, 12, 14, 1)
        self.stamp("P")
        p(f"""v_lshrrev_b32 v12, 2, v1
              s_lshl_b32 s{sT0}, s{sHP}, 6
              v_add_u32 v12, s{sT0}, v12
              v_lshlrev_b32 v12, 12, v12
              v_and_b32 v14, 3, v1
              v_lshl_add_u32 v12, v14, 4, v12
              s_lshl_b32 s{sT0}, s{sRB}, 8
              s_lshl_b32 s{sT1}, s{sT2}, 6
              s_add_u32 s{sT0}, s{sT0}, s{sT1}
              v_add_u32 v12, s{sT0}, v12""")
        for q in range(4):
            p(f"s_mov_b32 s{sT1}, {WS_YT + q*65536}\nbuffer_load_dwordx4 {v(16+4*q,4)}, v12, {s4(rWS)}, s{sT1} offen sc1")
        p(f"""s_add_u32 s{sT0}, s{sMX}, {XR}
              v_lshlrev_b32 v14, 4, v1
              v_add_u32 v14, s{sT0}, v14""")
        p(f"""v_bfe_u32 v15, v1, 2, 2
              v_lshl_add_u32 v15, v8, 4, v15
              v_bfe_u32 v11, v1, 1, 1
              v_lshl_add_u32 v15, v11, 3, v15
              v_lshlrev_b32 v15, 6, v15
              v_and_b32 v11, 1, v1
              v_lshl_add_u32 v15, v11, 3, v15
              v_add_u32 v15, s{sT0}, v15""")
        p(f"""s_lshl_b32 s{sT0}, s{sRB}, 7
              s_lshl_b32 s{sT1}, s{sT2}, 5
              s_add_u32 s{sT0}, s{sT0}, s{sT1}
              v_add_u32 v11, s{sT0}, v7
              v_lshlrev_b32 v11, 12, v11
              v_lshl_add_u32 v11, v6, 4, v11
              s_lshl_b32 s{sT0}, s{sHP}, 7
              s_add_u32 s{sT0}, s{sT0}, 2048
              v_add_u32 v11, s{sT0}, v11""")
        for q in range(4):
            p(f"s_waitcnt vmcnt({3-q})\nds_write_b128 v14, {v(16+4*q,4)} offset:{q*1024}")
        for qq in range(4):
            for e in range(2):
                p(f"ds_read_b64_tr_b16 {v(32+4*qq+2*e,2)}, v15 offset:{qq*16 + e*256}")
        for qq in range(4):
            p(f"s_waitcnt lgkmcnt({6-2*qq})\ns_mov_b32 s{sT1}, {qq*8*4096}\nbuffer_store_dwordx4 {v(32+4*qq,4)}, v11, {s4(rOUT)}, s{sT1} offen")
        self.stamp("P")
        self.stamp_store()
        p("s_endpgm")

    def cmul(self, d, x, z, t):
        return [f"v_pk_mul_f32 {v(t,2)}, {v(x+2,2)}, {v(z+2,2)}",
                f"v_pk_mul_f32 {v(t+2,2)}, {v(x,2)}, {v(z+2,2)}",
                f"v_pk_fma_f32 {v(d,2)}, {v(x,2)}, {v(z,2)}, {v(t,2)} neg_lo:[0,0,1] neg_hi:[0,0,1]",
                f"v_pk_fma_f32 {v(d+2,2)}, {v(x+2,2)}, {v(z,2)}, {v(t+2,2)}"]
    def emit_row(self, x, row, t, neg=False):
        n = "-" if neg else ""
        return [f"v_cvt_pk_bf16_f32 v{t}, v{x}, {n}v{x+2}", f"v_cvt_pk_bf16_f32 v{t+1}, v{x+1}, {n}v{x+3}",
                f"ds_write_b64 v28, {v(t,2)} offset:{row*544}"]
    def zip2(self, a, b):
        out = []
        for i in range(max(len(a), len(b))):
            if i < len(a): out.append(a[i])
            if i < len(b): out.append(b[i])
        return out

    def kgen_loads(self):
        p = self.p
        p(f"""s_lshl_b32 s{sCH}, s{sHP}, 6
              s_lshl_b32 s{sT0}, s{sRB}, 2
              s_add_u32 s{sCH}, s{sCH}, s{sT0}
              s_add_u32 s{sCH}, s{sCH}, s{sWV}
              s_lshl_b32 s{sT0}, s{sCH}, 8
              v_lshl_add_u32 v30, v1, 2, s{sT0}
              s_lshl_b32 s{sT0}, s{sCH}, 1
              v_mov_b32 v31, s{sT0}
              global_load_ushort v38, v31, {sp(sLDT)}
              global_load_dword v32, v30, {sp(sARE)}
              global_load_dword v33, v30, {sp(sAIM)}
              global_load_dword v34, v30, {sp(sBRE)}
              global_load_dword v35, v30, {sp(sBIM)}
              global_load_dword v36, v30, {sp(sCRE)}
              global_load_dword v37, v30, {sp(sCIM)}
              global_load_ushort v26, v31, {sp(sDSK)}""")
        p(f"""s_lshr_b32 s{sT0}, s{sWV}, 1
              s_lshl_b32 s{sT1}, s{sHP}, 1
              s_add_u32 s{sT0}, s{sT0}, s{sT1}
              s_lshl_b32 s{sT0}, s{sT0}, 11
              v_lshl_add_u32 v31, v1, 4, s{sT0}
              global_load_dwordx4 v[40:43], v31, {sp(sWP)}
              global_load_dwordx4 v[44:47], v31, {sp(sWP)} offset:1024""")

    def kgen(self):
        p = self.p
        p(f"""s_mul_i32 s{sT0}, s{sWV}, {KGS}
              s_add_u32 s{sT0}, s{sT0}, {XR}
              v_lshl_add_u32 v28, v1, 3, s{sT0}
              v_and_b32 v29, 15, v1
              v_mul_u32_u24 v29, 544, v29
              v_lshrrev_b32 v30, 4, v1
              v_lshl_add_u32 v29, v30, 4, v29
              v_add_u32 v29, s{sT0}, v29
              v_lshl_add_u32 v31, v1, 4, s{sT0}""")
        p(f"""v_bfe_u32 v48, v1, 2, 2
              v_lshrrev_b32 v49, 5, v1
              v_lshl_add_u32 v48, v49, 2, v48
              v_lshlrev_b32 v48, 6, v48
              v_bfe_u32 v49, v1, 4, 1
              v_lshl_add_u32 v48, v49, 5, v48
              v_and_b32 v49, 3, v1
              v_lshl_add_u32 v48, v49, 3, v48
              v_add_u32 v48, s{sT0}, v48
              s_waitcnt vmcnt(0)""")
        self.stamp("C", "k")
        p("ds_write_b128 v31, v[40:43]\nds_write_b128 v31, v[44:47] offset:1024")
        for u in range(2):
            for e in range(2):
                p(f"ds_read_b64_tr_b16 {v(12+4*u+2*e,2)}, v48 offset:{u*1024 + e*512}")
        p(f"""v_lshlrev_b32 v38, 16, v38
              v_lshlrev_b32 v26, 16, v26
              v_mul_f32 v39, s{sL2E}, v38
              v_fma_f32 v40, v38, s{sL2E}, -v39
              v_mov_b32 v41, 0x32a57060
              v_fmac_f32 v40, v38, v41
              v_exp_f32 v39, v39
              v_mul_f32 v40, 0x3f317218, v40
              v_fmac_f32 v39, v39, v40
              v_cvt_pk_bf16_f32 v39, v39, v39
              v_and_b32 v38, 0xffff0000, v39""")
        for k, (src, dst) in enumerate(((32, 64), (33, 66), (34, 68), (35, 70), (36, 72), (37, 74))):
            p(f"v_lshlrev_b32 v{dst}, 16, v{src}\nv_and_b32 v{dst+1}, 0xffff0000, v{src}")
        for r in (64, 66, 68, 70):
            p(f"v_pk_mul_f32 {v(r,2)}, {v(r,2)}, v[38:39] op_sel_hi:[1,0]")
        W, Z1, Z2, Z4, Z8, Z16, Z128 = 76, 80, 84, 88, 92, 96, 100
        p.extend(self.cmul(W, 72, 68, 40))
        p(f"""v_mul_f32 v64, s{sL2E}, v64
              v_mul_f32 v65, s{sL2E}, v65
              v_mul_f32 v66, {INV2PI:#x}, v66
              v_mul_f32 v67, {INV2PI:#x}, v67""")
        for Z, m in ((Z8, 8.0), (Z1, 1.0), (Z128, 128.0)):
            mh = struct.unpack("<I", struct.pack("<f", m))[0]
            p(f"""v_mul_f32 v44, {mh:#x}, v64
                  v_mul_f32 v45, {mh:#x}, v65
                  v_mul_f32 v46, {mh:#x}, v66
                  v_mul_f32 v47, {mh:#x}, v67
                  v_exp_f32 v44, v44
                  v_exp_f32 v45, v45
                  v_fract_f32 v46, v46
                  v_fract_f32 v47, v47
                  v_cos_f32 v{Z}, v46
                  v_cos_f32 v{Z+1}, v47
                  v_sin_f32 v{Z+2}, v46
                  v_sin_f32 v{Z+3}, v47
                  v_pk_mul_f32 {v(Z,2)}, {v(Z,2)}, v[44:45]
                  v_pk_mul_f32 {v(Z+2,2)}, {v(Z+2,2)}, v[44:45]""")
        p.extend(self.zip2(self.cmul(Z16, Z8, Z8, 40), self.cmul(Z2, Z1, Z1, 44)))
        p.extend(self.cmul(Z4, Z2, Z2, 40))
        self.stamp('C', 'k')
        YA, YB = 104, 108
        p(f"v_mov_b32 v48, 0x3f80\nv_mov_b32 v49, 0x3f80\nds_write_b64 v28, v[48:49]")
        p.extend(self.emit_row(Z8, 1, 50, True)); p.extend(self.emit_row(Z16, 2, 52, True))
        a = self.cmul(YA, Z8, Z16, 40) + self.emit_row(YA, 3, 48, True)
        b = self.cmul(YB, Z16, Z16, 44) + self.emit_row(YB, 4, 50, True)
        p.extend(self.zip2(a, b))
        for k in range(5, 16, 2):
            a = self.cmul(YA, YA, Z16, 40) + self.emit_row(YA, k, 48, True)
            b = (self.cmul(YB, YB, Z16, 44) + self.emit_row(YB, k + 1, 50, True)) if k + 1 < 16 else []
            p.extend(self.zip2(a, b))
        YF = 128
        for s in range(8): p(f"ds_read_b128 {v(YF+4*s,4)}, v29 offset:{s*64}")
        self.stamp('C', 'k')
        BA = 160
        XA, XB = 104, 108
        AF = 192
        DK = 112
        def mf(t):
            return [f"v_mfma_f32_16x16x32_bf16 {v(DK+4*t,4)}, {v(AF+4*s,4)}, {v(YF+4*s,4)}, {'0' if s == 0 else v(DK+4*t,4)}" for s in range(8)]
        def rd(): return [f"ds_read_b128 {v(AF+4*s,4)}, v29 offset:{s*64}" for s in range(8)]
        p.extend(self.cmul(BA + 4, W, Z128, 40))
        p.extend(self.zip2(self.emit_row(W, 0, 48), self.emit_row(BA + 4, 8, 50)))
        for e in range(1, 8):
            a = self.cmul(XA, W if e == 1 else XA, Z1, 40) + self.emit_row(XA, e, 48)
            b = self.cmul(XB, BA + 4 if e == 1 else XB, Z1, 44) + self.emit_row(XB, 8 + e, 50)
            p.extend(self.zip2(a, b))
        p.extend(rd())
        self.stamp('C', 'k')
        work = []
        for a_ in range(2, 8): work += self.cmul(BA + 4 * a_, BA + 4 * (a_ - 1), Z128, 40)
        p.extend(work[:8])
        p("s_waitcnt lgkmcnt(0)")
        p.extend(interleave(mf(0), work[8:]))
        p.extend(self.zip2(self.emit_row(BA + 8, 0, 48), self.emit_row(BA + 12, 4, 50)))
        for e in range(1, 4):
            a = self.cmul(XA, BA + 8 if e == 1 else XA, Z2, 40) + self.emit_row(XA, e, 48)
            b = self.cmul(XB, BA + 12 if e == 1 else XB, Z2, 44) + self.emit_row(XB, 4 + e, 50)
            p.extend(self.zip2(a, b))
        for a_ in (4, 6):
            for e in range(2):
                a = self.cmul(XA, BA + 4 * a_ if e == 0 else XA, Z4, 40) + self.emit_row(XA, 8 + 2 * (a_ - 4) + e, 48)
                b = self.cmul(XB, BA + 4 * (a_ + 1) if e == 0 else XB, Z4, 44) + self.emit_row(XB, 8 + 2 * (a_ - 3) + e, 50)
                p.extend(self.zip2(a, b))
        p.extend(rd())
        self.stamp('C', 'k')
        Z256 = 84
        w2 = self.cmul(Z256, Z128, Z128, 40) + self.cmul(XA, XB, Z128, 44) + self.cmul(XB, XB, Z256, 40)
        p.extend(w2)
        p("s_waitcnt lgkmcnt(0)")
        rows = self.zip2(self.emit_row(XA, 0, 48), self.emit_row(XB, 1, 50)) + self.emit_row(BA + 16, 8, 52)
        for k in (2, 4, 6):
            rows += self.zip2(self.cmul(XA, XA, Z256, 40) + self.emit_row(XA, k, 48), self.cmul(XB, XB, Z256, 44) + self.emit_row(XB, k + 1, 50))
        p.extend(interleave(mf(1), rows))
        p.extend(rd())
        for s, m in enumerate(mf(2)):
            p(f"s_waitcnt lgkmcnt({7-s})\n{m}")
        p(f"""v_cvt_pk_bf16_f32 v20, v{DK+1}, v{DK}
              v_cvt_pk_bf16_f32 v21, v{DK+3}, v{DK+2}
              v_cvt_pk_bf16_f32 v22, v{DK+4}, v{DK+5}
              v_cvt_pk_bf16_f32 v23, v{DK+6}, v{DK+7}
              v_cvt_pk_bf16_f32 v24, v{DK+8}, v{DK+9}
              v_cvt_pk_bf16_f32 v25, v{DK+10}, v{DK+11}""")

    Q, K, V = 64, 96, 128
    def g1_reads(self, s, ks, st):
        F = 160 + 20 * st; sg = s % 3
        xa = (2 + ks) if sg < 2 else (6 + ks); wa = 10 if sg < 2 else 11; o = STG if sg == 1 else 0
        X = lambda rt: f"ds_read_b128 {v(F+4*rt,4)}, v{xa} offset:{o + rt*4096}"
        Wr = lambda seg, e: f"ds_read_b64_tr_b16 {v(F+8+4*seg+2*e,2)}, v{wa} offset:{o + seg*8192 + ks*2048 + e*512}"
        return [X(0), Wr(0, 0), Wr(0, 1), Wr(1, 0), Wr(1, 1), X(1), Wr(2, 0), Wr(2, 1)]
    def g1_mfma(self, st, first):
        F = 160 + 20 * st
        x = lambda rt: v(F + 4 * rt, 4); w = lambda seg: v(F + 8 + 4 * seg, 4)
        def M(acc, a, b): return f"v_mfma_f32_32x32x16_bf16 {v(acc,16)}, {a}, {b}, {'0' if first else v(acc,16)}"
        return [M(self.Q, w(0), x(0)), M(self.K, w(1), x(0)), M(self.Q + 16, w(0), x(1)), M(self.K + 16, w(1), x(1)),
                M(self.V, x(0), w(2)), M(self.V + 16, x(1), w(2))]
    def gemm1(self):
        p = self.p
        p(f"""s_and_b32 s{sT0}, s{sWV}, 1
              s_lshl_b32 s{sT0}, s{sT0}, 13
              v_and_b32 v30, 31, v1
              v_lshl_add_u32 v30, v30, 7, s{sT0}
              v_lshrrev_b32 v31, 5, v1
              v_bfe_u32 v32, v1, 1, 3
              v_xor_b32 v32, v32, v31
              v_lshl_add_u32 v2, v32, 4, v30
              v_xor_b32 v3, 32, v2
              v_xor_b32 v4, 64, v2
              v_xor_b32 v5, 96, v2
              v_add_u32 v6, {2*STG}, v2
              v_add_u32 v7, {2*STG}, v3
              v_add_u32 v8, {2*STG}, v4
              v_add_u32 v9, {2*STG}, v5
              v_bfe_u32 v30, v1, 2, 2
              v_lshl_add_u32 v30, v31, 3, v30
              v_lshlrev_b32 v30, 7, v30
              v_bfe_u32 v32, v1, 3, 1
              s_lshr_b32 s{sT0}, s{sWV}, 1
              v_xor_b32 v32, s{sT0}, v32
              v_lshl_add_u32 v30, v32, 6, v30
              v_bfe_u32 v32, v1, 4, 1
              v_lshl_add_u32 v30, v32, 5, v30
              v_and_b32 v32, 3, v1
              v_lshl_add_u32 v30, v32, 3, v30
              v_add_u32 v10, 16384, v30
              v_add_u32 v11, {2*STG + 16384}, v30
              s_lshl_b32 s{sT0}, s{sHP}, 2
              v_mov_b32 v27, s{sT0}
              v_mov_b32 v30, 0x1000
              v_cmp_eq_u32 vcc, 0, v0
              v_cndmask_b32 v27, v30, v27, vcc
              v_mov_b32 v28, 1""")
        self.stamp("C")
        p("s_waitcnt lgkmcnt(0)\ns_barrier")
        self.stamp("C")
        p.extend(self.g1_reads(0, 0, 0))
        g = 0
        for s in range(16):
            for ks in range(4):
                st = g & 1
                M = self.g1_mfma(st, g == 0)
                if ks < 3:
                    R = self.g1_reads(s, ks + 1, st ^ 1)
                    p(f"s_waitcnt lgkmcnt(5)\n{M[0]}\n{R[0]}\n{R[1]}\ns_waitcnt lgkmcnt(5)\n{M[1]}\n{R[2]}\n{R[3]}\ns_waitcnt lgkmcnt(6)\n{M[2]}\n{R[4]}\n{R[5]}\n{M[3]}\n{R[6]}\n{R[7]}\ns_waitcnt lgkmcnt(8)\n{M[4]}\n{M[5]}")
                else:
                    R = self.g1_reads(s + 1, 0, st ^ 1) if s < 15 else [""] * 8
                    A = f"buffer_atomic_add v28, v27, {s4(rDBG)}, 0 offen sc1" if s == 1 else ""
                    p(f"s_waitcnt lgkmcnt(5)\n{M[0]}\ns_waitcnt lgkmcnt(3)\n{M[1]}\ns_waitcnt lgkmcnt(0)\ns_barrier\n{M[2]}\n{A}\n{R[0]}\n{R[1]}\n{R[2]}\n{M[3]}\n{R[3]}\n{R[4]}\n{R[5]}\n{M[4]}\n{R[6]}\n{R[7]}\n{M[5]}")
                g += 1
            if s % 2 == 1 and s < 15: self.stamp('C', 'g')
        self.stamp("C")

    def softmax2(self, P, OUT, E, T):
        L = []
        mx, mn, t0, t1 = T, T + 2, T + 4, T + 6
        L += [f"v_max3_f32 v{mx}, v{P}, v{P+1}, v{P+2}", f"v_min3_f32 v{mn}, v{P}, v{P+1}, v{P+2}"]
        for k in range(3, 15, 2):
            L += [f"v_max3_f32 v{mx}, v{mx}, v{P+k}, v{P+k+1}", f"v_min3_f32 v{mn}, v{mn}, v{P+k}, v{P+k+1}"]
        L += [f"v_max_f32 v{mx}, v{mx}, v{P+15}", f"v_min_f32 v{mn}, v{mn}, v{P+15}",
              f"v_mov_b32 v{t0}, v{mx}", f"v_mov_b32 v{t1}, v{mn}",
              f"v_permlane32_swap_b32 v{t0}, v{mx}", f"v_permlane32_swap_b32 v{t1}, v{mn}",
              f"v_max_f32 v{mx}, v{mx}, v{t0}", f"v_min_f32 v{mn}, v{mn}, v{t1}",
              f"v_mul_f32 v{mx}, s{sL2E}, v{mx}", f"v_mul_f32 v{mn}, s{sL2E}, v{mn}"]
        for k in range(0, 16, 2):
            L += [f"v_pk_fma_f32 {v(E+k,2)}, {v(P+k,2)}, v[62:63], {v(mx,2)} op_sel_hi:[1,1,0] neg_lo:[0,0,1] neg_hi:[0,0,1]",
                  f"v_pk_fma_f32 {v(P+k,2)}, {v(P+k,2)}, v[62:63], {v(mn,2)} op_sel_hi:[1,1,0] neg_lo:[1,0,0] neg_hi:[1,0,0]"]
        for k in range(16):
            L += [f"v_exp_f32 v{E+k}, v{E+k}", f"v_exp_f32 v{P+k}, v{P+k}"]
        L += [f"v_pk_add_f32 {v(mx,2)}, {v(E,2)}, {v(E+2,2)}", f"v_pk_add_f32 {v(mn,2)}, {v(P,2)}, {v(P+2,2)}"]
        for k in range(4, 16, 2):
            L += [f"v_pk_add_f32 {v(mx,2)}, {v(mx,2)}, {v(E+k,2)}", f"v_pk_add_f32 {v(mn,2)}, {v(mn,2)}, {v(P+k,2)}"]
        L += [f"v_add_f32 v{mx}, v{mx}, v{mx+1}", f"v_add_f32 v{mn}, v{mn}, v{mn+1}",
              f"v_mov_b32 v{t0}, v{mx}", f"v_mov_b32 v{t1}, v{mn}",
              f"v_permlane32_swap_b32 v{t0}, v{mx}", f"v_permlane32_swap_b32 v{t1}, v{mn}",
              f"v_add_f32 v{mx}, v{mx}, v{t0}", f"v_add_f32 v{mn}, v{mn}, v{t1}",
              f"v_rcp_f32 v{mx}, v{mx}", f"v_rcp_f32 v{mn}, v{mn}"]
        for k in range(0, 16, 2):
            L += [f"v_pk_mul_f32 {v(E+k,2)}, {v(E+k,2)}, {v(mx,2)} op_sel_hi:[1,0]", f"v_pk_mul_f32 {v(P+k,2)}, {v(P+k,2)}, {v(mn,2)} op_sel_hi:[1,0]"]
        for k in range(8):
            L += [f"v_cvt_pk_bf16_f32 v{OUT+k}, v{E+2*k}, v{E+2*k+1}", f"v_cvt_pk_bf16_f32 v{OUT+8+k}, v{P+2*k}, v{P+2*k+1}"]
        return L
    def featmap(self, ACC, OUT):
        p = self.p
        B, P, E, T = 160, 176, 208, 240
        for k in range(16): p(f"v_cvt_pk_bf16_f32 v{B+k}, v{ACC+2*k}, v{ACC+2*k+1}")
        for u in range(2):
            for rt in range(2):
                p(f"v_mfma_f32_32x32x16_bf16 {v(P+16*rt,16)}, {v(12+4*u,4)}, {v(B+8*rt+4*u,4)}, {'0' if u == 0 else v(P+16*rt,16)}")
        return self.zip2(self.softmax2(P, OUT, E, T), self.softmax2(P + 16, OUT + 16, E + 16, T + 8))

    def k_epilogue(self):
        p = self.p
        p(f"v_mov_b32 v62, s{sL2E}\nv_mov_b32 v63, s{sL2E}")
        sm = self.featmap(self.K, self.K)
        p(f"""s_lshl_b32 s{sT0}, s{sWV}, 13
              s_add_u32 s{sT0}, s{sT0}, {XR}
              v_and_b32 v40, 5, v1
              v_bfe_u32 v41, v1, 1, 1
              v_lshl_or_b32 v40, v41, 3, v40
              v_bfe_u32 v41, v1, 3, 1
              v_lshl_or_b32 v40, v41, 1, v40
              v_lshrrev_b32 v41, 5, v1
              v_xor_b32 v40, v40, v41
              v_and_b32 v42, 31, v1
              v_lshlrev_b32 v42, 7, v42
              v_lshl_add_u32 v42, v40, 3, v42
              v_add_u32 v28, s{sT0}, v42""")
        for k in range(1, 8):
            p(f"v_xor_b32 v{28+k}, {((k >> 2) * 8 + (k & 3) * 2) * 8}, v28")
        p(f"""v_bfe_u32 v40, v1, 2, 2
              v_lshl_add_u32 v42, v41, 2, v40
              v_lshlrev_b32 v42, 7, v42
              v_and_b32 v43, 1, v40
              v_lshl_or_b32 v43, v41, 2, v43
              v_lshrrev_b32 v40, 1, v40
              v_lshl_or_b32 v43, v40, 3, v43
              v_bfe_u32 v40, v1, 4, 1
              v_and_b32 v44, 3, v1
              v_lshl_or_b32 v40, v40, 2, v44
              v_xor_b32 v43, v43, v40
              s_and_b32 s{sT1}, s{sWV}, 1
              s_lshl_b32 s{sT1}, s{sT1}, 3
              v_xor_b32 v43, s{sT1}, v43
              v_lshl_add_u32 v42, v43, 3, v42
              v_add_u32 v36, s{sT0}, v42
              v_xor_b32 v37, 16, v36
              v_xor_b32 v38, 64, v36
              v_xor_b32 v39, 80, v36""")
        vb = [f"v_cvt_pk_bf16_f32 v{self.V+k}, v{self.V+2*k}, v{self.V+2*k+1}" for k in range(16)]
        p.extend(vb)
        self.stamp('C', 'e')
        p.extend(sm)
        self.stamp('C', 'e')
        for rt in range(2):
            for k in range(8):
                p(f"ds_write_b64 v{28+k}, {v(self.K+16*rt+2*k,2)} offset:{rt*4096}")
        PK = 160
        for pn in range(2):
            for rt in range(2):
                for u in range(2):
                    for e in range(2):
                        p(f"ds_read_b64_tr_b16 {v(PK+16*pn+8*rt+4*u+2*e,2)}, v{36+2*pn+e} offset:{rt*4096 + u*2048 + e*1024}")
        KV = 192
        p("v_mov_b32 v224, 0\nv_mov_b32 v225, 0\nv_mov_b32 v226, 0x3f803f80")
        n = 0
        for pn in (1, 0):
            for rt in range(2):
                for u in range(2):
                    f = PK + 16 * pn + 8 * rt + 4 * u
                    if n == 0: p("s_waitcnt lgkmcnt(0)")
                    p(f"v_mfma_f32_32x32x16_bf16 {v(KV+16*pn,16)}, {v(f,4)}, {v(self.V+8*rt+4*u,4)}, {'0' if rt == 0 and u == 0 else v(KV+16*pn,16)}")
                    for d in range(4): p(f"v_dot2c_f32_bf16 v{224+pn}, v{f+d}, v226")
                    n += 1
        self.stamp('C', 'e')
        p(f"""v_lshlrev_b32 v40, 4, v1
              v_add_u32 v41, s{sT0}, v40
              v_permlane32_swap_b32 v224, v225
              v_add_f32 v224, v224, v225
              v_lshlrev_b32 v42, 2, v1
              v_add_u32 v42, s{sT0}, v42""")
        for q in range(4): p(f"ds_write_b128 v41, {v(KV+16+4*q,4)} offset:{q*1024}")
        p(f"""ds_write_b32 v42, v224 offset:4096
              s_xor_b32 s{sT1}, s{sWV}, 1
              s_lshl_b32 s{sT1}, s{sT1}, 13
              s_add_u32 s{sT1}, s{sT1}, {XR}
              v_add_u32 v41, s{sT1}, v40
              v_and_b32 v42, 31, v1
              v_lshlrev_b32 v43, 2, v42
              v_add_u32 v42, s{sT1}, v43
              s_waitcnt lgkmcnt(0)
              s_barrier""")
        self.stamp('C', 'e')
        for q in range(4): p(f"ds_read_b128 {v(KV+16+4*q,4)}, v41 offset:{q*1024}")
        p(f"ds_read_b32 v225, v42 offset:{4096+128}")
        p(f"""s_lshl_b32 s{sT0}, s{sHP}, 4
              s_add_u32 s{sT0}, s{sT0}, s{sRB}
              s_lshl_b32 s{sT0}, s{sT0}, 2
              s_and_b32 s{sT1}, s{sWV}, 1
              s_add_u32 s{sT0}, s{sT0}, s{sT1}
              s_and_b32 s{sT1}, s{sWV}, 2
              s_add_u32 s{sT0}, s{sT0}, s{sT1}
              s_mul_i32 s{sT0}, s{sT0}, {KVREC}
              s_add_u32 s{sT0}, s{sT0}, {WS_KV}""")
        for q in range(4):
            p(f"s_waitcnt lgkmcnt({4-q})")
            for k in range(2): p(f"v_pk_add_f32 {v(KV+4*q+2*k,2)}, {v(KV+4*q+2*k,2)}, {v(KV+16+4*q+2*k,2)}")
        for k in range(8): p(f"v_cvt_pk_bf16_f32 v{228+k}, v{KV+2*k}, v{KV+2*k+1}")
        p(f"""buffer_store_dwordx4 v[228:231], v40, {s4(rWS)}, s{sT0} offen sc1
              buffer_store_dwordx4 v[232:235], v40, {s4(rWS)}, s{sT0} offen offset:1024 sc1
              s_waitcnt lgkmcnt(0)
              v_add_f32 v224, v224, v225
              s_mov_b32 exec_hi, 0
              buffer_store_dword v224, v43, {s4(rWS)}, s{sT0} offen offset:2048 sc1
              s_mov_b64 exec, -1""")

    def ktables(self):
        p = self.p
        p(f"""s_mul_i32 s{sT0}, s{sWV}, {TBS}
              s_add_u32 s{sT0}, s{sT0}, {XR}
              v_lshl_add_u32 v28, v1, 4, s{sT0}
              v_mov_b32 v32, 0
              v_mov_b32 v33, 0
              v_mov_b32 v34, 0
              v_mov_b32 v35, 0
              ds_write_b128 v28, v[32:35]
              ds_write_b128 v28, v[32:35] offset:1024
              ds_write_b128 v28, v[32:35] offset:2048
              s_mov_b64 exec, 0x1fff
              ds_write_b128 v28, v[32:35] offset:3072
              s_mov_b64 exec, -1
              v_and_b32 v29, 15, v1
              v_lshrrev_b32 v30, 4, v1""")
        p(f"""v_lshlrev_b32 v31, 8, v30
              v_lshl_add_u32 v31, v29, 4, v31
              s_add_u32 s{sT1}, s{sT0}, {2*(256+16) - 4}
              v_add_u32 v31, s{sT1}, v31
              v_and_b32 v36, 1, v30
              v_lshlrev_b32 v36, 7, v36
              v_lshl_add_u32 v36, v29, 2, v36
              s_add_u32 s{sT1}, s{sT0}, {T_R2 + 120}
              v_add_u32 v36, s{sT1}, v36
              v_lshrrev_b32 v37, 1, v30
              v_lshlrev_b32 v37, 8, v37
              v_lshl_add_u32 v37, v29, 4, v37
              v_and_b32 v39, 1, v30
              v_lshl_add_u32 v37, v39, 3, v37
              s_add_u32 s{sT1}, s{sT0}, {32 - 8}
              v_add_u32 v37, s{sT1}, v37
              v_lshlrev_b32 v38, 7, v30
              v_lshl_add_u32 v38, v29, 1, v38
              s_add_u32 s{sT1}, s{sT0}, {T_R3 + 60}
              v_add_u32 v38, s{sT1}, v38
              v_mov_b32 v39, s{sT0}
              s_mov_b32 exec_hi, 0""")
        def w16(addr, reg, hi, off): return f"ds_write_b16{'_d16_hi' if hi else ''} v{addr}, v{reg} offset:{off}"
        r_of = {0: (22, 0), 1: (22, 1), 2: (23, 0), 3: (23, 1)}
        for dx, r in ((-1, 0), (0, 0), (1, 0), (2, 1), (3, 2), (4, 2), (5, 2), (6, 3)):
            p(w16(31, *r_of[r], T_KA + 2 * ((dx + 16) ^ 1) - 32 + 4))
            p(w16(31, *r_of[r], T_KB + 2 * ((dx + 15) ^ 1) - 32 + 4))
        for r in range(4): p(w16(38, 24 + (r >> 1), r & 1, 32 * r))
        p("s_mov_b64 exec, -1")
        p(f"ds_write_b64 v37, v[20:21] offset:{T_KA + 8}")
        for r, (reg, hi) in enumerate(((20, 1), (20, 0), (21, 1), (21, 0))):
            p(w16(37, reg, hi, T_KB + 2 * ((r + 15) ^ 1) - 32 + 8))
        p(f"s_mov_b32 exec_lo, 0\nds_write_b32 v36, v22\nds_write_b32 v36, v23 offset:64\ns_mov_b32 exec_hi, 1")
        for x in range(511, 515):
            p(w16(39, 24, 0, T_KA + 2 * ((x + 16) ^ 1))); p(w16(39, 24, 0, T_KB + 2 * ((x + 15) ^ 1)))
        p("s_mov_b32 exec_hi, 0x80000000")
        for x in (563, 564):
            p(w16(39, 23, 1, T_KA + 2 * ((x + 16) ^ 1))); p(w16(39, 23, 1, T_KB + 2 * ((x + 15) ^ 1)))
        p("s_mov_b64 exec, -1")

    Y = 96
    BOX = 128
    def conv_setup(self):
        p = self.p
        p(f"""s_mul_i32 s{sT0}, s{sWV}, {TBS}
              s_add_u32 s{sT0}, s{sT0}, {XR}
              v_and_b32 v40, 15, v1
              v_lshrrev_b32 v41, 4, v1
              v_lshlrev_b32 v28, 5, v40
              v_lshl_add_u32 v28, v41, 4, v28
              s_add_u32 s{sT1}, s{sT0}, {T_U + 16 - 512}
              v_add_u32 v28, s{sT1}, v28
              s_add_u32 s{sT1}, s{sT0}, {T_U}
              v_mov_b32 v29, s{sT1}
              v_and_b32 v42, 1, v40
              v_xor_b32 v42, 1, v42
              v_mul_u32_u24 v42, {T_KB - 4}, v42
              v_lshrrev_b32 v43, 1, v40
              v_lshl_add_u32 v42, v43, 2, v42
              v_lshlrev_b32 v43, 4, v41
              v_sub_u32 v42, v42, v43
              s_add_u32 s{sT1}, s{sT0}, {32 - 12}
              v_add_u32 v30, s{sT1}, v42
              v_add_u32 v31, 1024, v30
              v_lshlrev_b32 v43, 2, v41
              v_sub_u32 v43, v40, v43
              s_add_u32 s{sT1}, s{sT0}, {T_R2 + 120 - 24}
              v_lshl_add_u32 v32, v43, 3, s{sT1}
              s_add_u32 s{sT1}, s{sT0}, {T_R3 + 60 - 12}
              v_lshl_add_u32 v33, v43, 2, s{sT1}""")
        for r in range(32): p(f"v_mov_b32 v{self.Y+r}, 0")
    def a_reads(self, dst, c):
        base, o = (30, c // 2) if c <= 504 else (31, c // 2 - 256)
        return [f"ds_read2_b32 {v(dst,2)}, v{base} offset0:{o+3} offset1:{o+2}", f"ds_read2_b32 {v(dst+2,2)}, v{base} offset0:{o+1} offset1:{o}"]
    def f_read(self, dst, x0, tmp):
        if x0 >= 0: return [f"ds_read_b128 {v(dst,4)}, v28 offset:{512 + 2*x0}"]
        return [f"v_add_u32 v{tmp}, {512 + 2*x0}, v28", f"v_max_u32 v{tmp}, v{tmp}, v29", f"ds_read_b128 {v(dst,4)}, v{tmp}"]
    def mm(self, acc, a, b, zero=False):
        return f"v_mfma_f32_16x16x32_bf16 {v(acc,4)}, {v(a,4)}, {v(b,4)}, {'0' if zero else v(acc,4)}"
    def conv_class_reads(self, rho, st):
        F = 160 + 40 * st; c = 16 + 32 * rho
        L = self.a_reads(F + 32, c) + self.f_read(F, -c, 34 + st) + self.f_read(F + 4, 256 - c, 0) + self.a_reads(F + 36, c + 256)
        for P in range(2, 8): L += self.f_read(F + 4 * P, 256 * P - c, 0)
        return L
    def conv_class(self, rho, st, nxt):
        F = 160 + 40 * st; Y = self.Y
        M = []
        for P in range(8):
            M.append(self.mm(Y + 4 * P, F + 32, F + 4 * P))
            if P < 7: M.append(self.mm(Y + 4 * (P + 1), F + 36, F + 4 * P))
        M = [M[0], M[2], M[1], M[4], M[3], M[6], M[5], M[8], M[7], M[10], M[9], M[12], M[11], M[14], M[13]]
        self.p("s_waitcnt lgkmcnt(0)")
        self.p.extend(interleave(M, nxt))
    def conv_coarse(self, st):
        p = self.p; F = 160 + 40 * st; Y = self.Y; BOX = self.BOX
        O = 160 + 40 * (st ^ 1)
        G, A5, A6 = O, O + 24, O + 28
        TP = 40
        R = self.a_reads(A5, 528) + self.a_reads(A6, 576) + self.f_read(G, -24, 36)
        for q in range(1, 6): R += self.f_read(G + 4 * q, 256 * q - 24, 0)
        p.extend(R)
        T3 = 64
        for w in range(2):
            for D in range(3):
                d = TP + 12 * w + 4 * D; o = w + 32 * D
                p(f"ds_read2_b32 {v(d,2)}, v32 offset0:{o+6} offset1:{o+4}\nds_read2_b32 {v(d+2,2)}, v32 offset0:{o+2} offset1:{o}")
        p("s_waitcnt lgkmcnt(12)")
        for P in range(6): p(self.mm(Y + 4 * (P + 2), A5, F + 4 * P))
        for D in range(4):
            d = T3 + 4 * D; o = 16 * D
            p(f"ds_read2_b32 {v(d,2)}, v33 offset0:{o+3} offset1:{o+2}\nds_read2_b32 {v(d+2,2)}, v33 offset0:{o+1} offset1:{o}")
        for P in range(4): p(self.mm(Y + 4 * (P + 4), A6, F + 4 * P))
        p("s_waitcnt lgkmcnt(0)")
        VT = [152, 156, O + 32, O + 36]; VP = [A5, A6];
        def vm(dst, src, box): return self.mm(dst, src, BOX + 4 * box, zero=True)
        def pack(dst, a, b): return [f"v_cvt_pk_bf16_f32 v{dst+r}, v{a+r}, v{b+r}" for r in range(4)]
        jobs = []
        for q in range(6):
            jobs.append((F + 4 * q, 0, F + 4 * q, 1, [(q + D, TP + 4 * (D - 2)) for D in (2, 3, 4) if q + D < 8]))
            jobs.append((G + 4 * q, 2, G + 4 * q, 3, [(q + D, TP + 12 + 4 * (D - 2)) for D in (2, 3, 4) if q + D < 8]))
            if q < 4: jobs.append((F + 4 * q, 4, G + 4 * q, 5, [(q + D, T3 + 4 * (D - 4)) for D in range(4, 8 - q)]))
        n = len(jobs)
        for i in range(n + 2):
            if i < n:
                a, ba, b, bb, _ = jobs[i]; k = i & 1
                p(vm(VT[2 * k], a, ba)); p(vm(VT[2 * k + 1], b, bb))
            if i >= 2:
                for acc, tap in jobs[i - 2][4]: p(self.mm(Y + 4 * acc, VP[i & 1], tap))
            if 1 <= i <= n:
                k = (i - 1) & 1
                p.extend(pack(VP[k], VT[2 * k], VT[2 * k + 1]))
    def conv_out(self):
        p = self.p; Y = self.Y
        p(f"""v_lshrrev_b32 v41, 4, v1
              v_lshlrev_b32 v41, 3, v41
              v_sub_u32 v40, v28, v41""")
        for P in range(8): p(f"ds_read_b64 {v(160+2*P,2)}, v40 offset:{512 + 512*P}")
        p(f"""s_lshl_b32 s{sT0}, s{sCH}, 12
              s_add_u32 s{sT0}, s{sT0}, {WS_YT}
              v_and_b32 v42, 15, v1
              v_lshlrev_b32 v42, 5, v42
              v_bfe_u32 v43, v1, 5, 1
              v_lshl_add_u32 v42, v43, 4, v42
              v_bfe_u32 v43, v1, 4, 1
              v_lshl_add_u32 v42, v43, 9, v42""")
        for P in range(8):
            p(f"s_waitcnt lgkmcnt({7-P})")
            a = 160 + 2 * P
            p(f"""v_lshlrev_b32 v44, 16, v{a}
                  v_and_b32 v45, 0xffff0000, v{a}
                  v_lshlrev_b32 v46, 16, v{a+1}
                  v_and_b32 v47, 0xffff0000, v{a+1}
                  v_pk_fma_f32 {v(Y+4*P,2)}, v[44:45], v[26:27], {v(Y+4*P,2)} op_sel_hi:[1,0,1]
                  v_pk_fma_f32 {v(Y+4*P+2,2)}, v[46:47], v[26:27], {v(Y+4*P+2,2)} op_sel_hi:[1,0,1]
                  v_cvt_pk_bf16_f32 v{176+2*P}, v{Y+4*P}, v{Y+4*P+1}
                  v_cvt_pk_bf16_f32 v{177+2*P}, v{Y+4*P+2}, v{Y+4*P+3}""")
        for P in range(0, 8, 2):
            a = 176 + 2 * P
            p(f"v_permlane16_swap_b32 v{a}, v{a+2}\nv_permlane16_swap_b32 v{a+1}, v{a+3}")
            p(f"buffer_store_dwordx4 {v(a,4)}, v42, {s4(rWS)}, s{sT0} offen offset:{512*P} sc1")

    def o_phase(self):
        p = self.p; PH = self.Q
        KF, ZR, N = 200, 216, 160
        p(f"""s_lshr_b32 s{sT0}, s{sWV}, 1
              s_lshl_b32 s{sT1}, s{sT0}, 12
              s_add_u32 s{sT1}, s{sT1}, {KVF}
              v_lshl_add_u32 v40, v1, 4, s{sT1}
              s_lshl_b32 s{sT1}, s{sT0}, 7
              s_add_u32 s{sT1}, s{sT1}, {ZF}
              v_lshrrev_b32 v41, 5, v1
              v_lshl_add_u32 v41, v41, 4, s{sT1}""")
        for f in range(4): p(f"ds_read_b128 {v(KF+4*f,4)}, v40 offset:{f*1024}")
        for f in range(4): p(f"ds_read_b128 {v(ZR+4*f,4)}, v41 offset:{f*32}")
        p(f"""v_mov_b32 v232, 0
              v_mov_b32 v234, 0
              s_lshl_b32 s{sT1}, s{sRB}, 4
              s_add_u32 s{sT1}, s{sT1}, s{sHP}
              s_lshl_b32 s{sT1}, s{sT1}, 14
              s_lshl_b32 s{sT0}, s{sT0}, 11
              s_add_u32 s{sT1}, s{sT1}, s{sT0}
              s_and_b32 s{sT0}, s{sWV}, 1
              s_lshl_b32 s{sT0}, s{sT0}, 13
              s_add_u32 s{sT1}, s{sT1}, s{sT0}
              s_add_u32 s{sT1}, s{sT1}, {WS_O}
              v_lshlrev_b32 v40, 4, v1""")
        for f in range(4):
            p(f"s_waitcnt lgkmcnt({7-f})")
            for rt in range(2):
                p(f"v_mfma_f32_32x32x16_bf16 {v(N+16*rt,16)}, {v(KF+4*f,4)}, {v(PH+16*rt+4*f,4)}, {'0' if f == 0 else v(N+16*rt,16)}")
        p("s_waitcnt lgkmcnt(0)")
        for d in range(16):
            for rt in range(2): p(f"v_dot2c_f32_bf16 v{232+2*rt}, v{PH+16*rt+d}, v{ZR+d}")
        p(f"""v_mov_b32 v236, v232
              v_mov_b32 v237, v234
              v_permlane32_swap_b32 v236, v232
              v_permlane32_swap_b32 v237, v234
              v_add_f32 v232, v232, v236
              v_add_f32 v234, v234, v237
              v_add_f32 v232, 0x358637bd, v232
              v_add_f32 v234, 0x358637bd, v234
              v_rcp_f32 v232, v232
              v_rcp_f32 v234, v234""")
        for rt in range(2):
            for k in range(8):
                p(f"v_pk_mul_f32 {v(N+16*rt+2*k,2)}, {v(N+16*rt+2*k,2)}, {v(232+2*rt,2)} op_sel_hi:[1,0]")
            for k in range(8):
                p(f"v_cvt_pk_bf16_f32 v{KF+8*rt+k}, v{N+16*rt+2*k}, v{N+16*rt+2*k+1}")
            p(f"s_add_u32 s{sT0}, s{sT1}, {rt*4096}")
            for u in range(2):
                p(f"buffer_store_dwordx4 {v(KF+8*rt+4*u,4)}, v40, {s4(rWS)}, s{sT0} offen offset:{u*1024} sc1")

    def gemm2(self):
        p = self.p
        ACC, OF, WF, ND = 64, 96, 224, 32
        p(f"""s_lshl_b32 s{sT3}, s{sRB2}, 18
              s_lshl_b32 s{sT0}, s{sWV}, 12
              s_add_u32 s{sT3}, s{sT3}, s{sT0}
              s_add_u32 s{sT3}, s{sT3}, {WS_O}
              v_lshlrev_b32 v40, 4, v1
              v_and_b32 v41, 15, v1
              v_lshlrev_b32 v41, 2, v41
              s_lshl_b32 s{sT0}, s{sRB2}, 8
              s_add_u32 s{sT0}, s{sT0}, {WS_FL + 4096}
              v_add_u32 v41, s{sT0}, v41""")
        p(f"""v_bfe_u32 v30, v1, 2, 2
              v_lshrrev_b32 v31, 5, v1
              v_lshl_add_u32 v30, v31, 2, v30
              v_lshlrev_b32 v30, 7, v30
              v_bfe_u32 v32, v1, 3, 1
              v_lshl_add_u32 v30, v32, 6, v30
              v_bfe_u32 v32, v1, 4, 1
              v_lshl_add_u32 v30, v32, 5, v30
              v_and_b32 v32, 3, v1
              v_lshl_add_u32 v2, v32, 3, v30
              v_xor_b32 v3, 64, v2
              v_add_u32 v4, 0x10000, v2
              v_add_u32 v5, 0x10000, v3
              v_add_u32 v6, {KVF}, v2
              v_add_u32 v7, {KVF}, v3""")
        self.poll(rWS, 41, 42, 1)
        self.stamp("C")
        def oload(n):
            pos, ks = n >> 2, n & 3
            L = []
            if ks == 0: L += [f"s_add_u32 s{sT0}, s{sCB}, {pos}", f"s_and_b32 s{sT0}, s{sT0}, 15", f"s_lshl_b32 s{sT0}, s{sT0}, 14", f"s_add_u32 s{sKX}, s{sT0}, s{sT3}"]
            L.append(f"buffer_load_dwordx4 {v(OF+4*(n % ND),4)}, v40, {s4(rWS)}, s{sKX} offen offset:{ks*1024} sc1")
            return L
        for n in range(ND): p.extend(oload(n))
        p("s_barrier")
        def wreads(n):
            pos, ks = n >> 2, n & 3
            b, o = (2, pos * 8192) if pos < 8 else (4, (pos - 8) * 8192) if pos < 15 else (6, 0)
            f = WF + 8 * (n & 1)
            return [f"ds_read_b64_tr_b16 {v(f+4*ct+2*e,2)}, v{b+ct} offset:{o + ks*2048 + e*1024}" for ct in range(2) for e in range(2)]
        p.extend(wreads(0))
        for n in range(64):
            R = wreads(n + 1) if n < 63 else []
            f = WF + 8 * (n & 1); o = OF + 4 * (n % ND)
            left = min(ND - 1, 63 - n)
            p(f"s_waitcnt vmcnt({left}) lgkmcnt(2)")
            p(f"v_mfma_f32_32x32x16_bf16 {v(ACC,16)}, {v(f,4)}, {v(o,4)}, {'0' if n == 0 else v(ACC,16)}")
            p.extend(R[:2])
            p(f"s_waitcnt lgkmcnt({2 if R else 0})")
            p(f"v_mfma_f32_32x32x16_bf16 {v(ACC+16,16)}, {v(f+4,4)}, {v(o,4)}, {'0' if n == 0 else v(ACC+16,16)}")
            p.extend(R[2:])
            if n + ND < 64: p.extend(oload(n + ND))
            if n % 8 == 7 and n < 63 or n == 0: self.stamp('C', '2')
        self.stamp("C")
        p(f"""s_lshl_b32 s{sT0}, s{sRB2}, 7
              s_lshl_b32 s{sT1}, s{sWV}, 5
              s_add_u32 s{sT0}, s{sT0}, s{sT1}
              v_and_b32 v41, 31, v1
              v_add_u32 v41, s{sT0}, v41
              v_lshlrev_b32 v41, 12, v41
              v_lshl_add_u32 v41, v31, 4, v41
              s_lshl_b32 s{sT0}, s{sCB}, 7""")
        for ct in range(2):
            for k in range(8): p(f"v_cvt_pk_bf16_f32 v{96+8*ct+k}, v{ACC+16*ct+2*k}, v{ACC+16*ct+2*k+1}")
            for k in (0, 4):
                a = 96 + 8 * ct + k
                p(f"v_permlane32_swap_b32 v{a}, v{a+2}\nv_permlane32_swap_b32 v{a+1}, v{a+3}")
                p(f"buffer_store_dwordx4 {v(a,4)}, v41, {s4(rOUT)}, s{sT0} offen offset:{ct*64 + k*8}")

    def box_table(self):
        boxes = [(4, 1, -16), (8, 2, -16), (12, 1, -24), (16, 2, -24), (8, 3, -16), (16, 4, -24)]
        L = [".p2align 6", "L_box:"]
        for off, w, x0 in boxes:
            for l in range(64):
                r, g = l & 15, l >> 4
                val = [0x3f80 if (r - off - w) <= (x0 + 8 * g + j) <= (r - off + w) else 0 for j in range(8)]
                L.append(".long " + ", ".join(f"{val[2*d] | (val[2*d+1] << 16):#x}" for d in range(4)))
        return "\n".join(L)

    def consumer(self):
        p = self.p; c = self.c
        self.stamp("C")
        self.kgen_loads()
        self.kgen()
        self.gemm1()
        self.k_epilogue()
        self.stamp("C")
        sm = self.featmap(self.Q, self.Q)
        p(f"""s_getpc_b64 {sp(sE0)}
              L_pc:
              s_add_u32 s{sE0}, s{sE0}, L_box-L_pc
              s_addc_u32 s{sE0+1}, s{sE0+1}, 0
              v_lshlrev_b32 v40, 4, v1
              v_add_u32 v41, 4096, v40""")
        for b in range(6):
            p(f"global_load_dwordx4 {v(self.BOX+4*b,4)}, v{40 + b//4}, {sp(sE0)} offset:{(b % 4)*1024}")
        p.extend(sm)
        p("s_waitcnt vmcnt(0)")
        self.stamp("C")
        p("s_barrier")
        self.ktables()
        self.conv_setup()
        p("s_waitcnt lgkmcnt(0)\ns_barrier")
        self.stamp("C")
        order = list(range(1, 8)) + [0]
        st = 0
        p.extend(self.conv_class_reads(order[0], st))
        def run(i):
            nonlocal st
            nxt = self.conv_class_reads(order[i + 1], st ^ 1) if (i + 1 < 8 and i + 1 != c.conv_split) else []
            self.conv_class(order[i], st, nxt)
            if nxt: st ^= 1
        for i in range(c.conv_split): run(i)
        self.stamp("C")
        p("s_barrier")
        self.stamp("C")
        self.o_phase()
        if c.conv_split < 8:
            st = 1
            st = 0
            p.extend(self.conv_class_reads(order[c.conv_split], st))
        p("s_waitcnt vmcnt(0)")
        self.stamp("C")
        p("s_barrier")
        for i in range(c.conv_split, 8): run(i)
        self.conv_coarse(st)
        self.conv_out()
        self.stamp("C")
        self.gemm2()
        self.stamp("C")
        self.stamp_store()
        p("L_end:\ns_endpgm")

    def build(self):
        self.prologue()
        self.consumer()
        self.producer()
        body = self.p.finalize()
        hdr = open("concat_heads__linear_kernel_hedgehog__ssm_conv_s4__prompt.s.ref").read().split("; Override launch")[0]
        return f"""{hdr}; @launch grid=(256,1,1) block=(512,1,1) lds={LDS_BYTES}
.amdgcn_target "amdgcn-amd-amdhsa--gfx950"
.text
.globl {NAME}
.p2align 8
.type {NAME},@function
{NAME}:
{body}
{self.box_table()}
.section .rodata,"a"
.p2align 6
.amdhsa_kernel {NAME}
  .amdhsa_next_free_vgpr 256
  .amdhsa_next_free_sgpr 102
  .amdhsa_accum_offset 256
  .amdhsa_group_segment_fixed_size 0
  .amdhsa_kernarg_size 128
  .amdhsa_user_sgpr_count 2
  .amdhsa_user_sgpr_kernarg_segment_ptr 1
  .amdhsa_system_sgpr_workgroup_id_x 1
.end_amdhsa_kernel
"""

if __name__ == "__main__":
    cfg = Cfg()
    out = sys.argv[1]
    for a in sys.argv[2:]:
        k, val = a.split("=")
        setattr(cfg, k, eval(val))
    open(out, "w").write(Gen(cfg).build())
```
